```python
import torch

def _softmax(x, axis=-1):
    return torch.softmax(x, dim=axis)
def _gelu(x):
    return torch.nn.functional.gelu(x, approximate="tanh")
def _silu(x):
    return torch.nn.functional.silu(x)
def _sigmoid(x):
    return torch.sigmoid(x)
def _layernorm(x, axis=-1, eps=1e-5):
    m = x.mean(dim=axis, keepdim=True)
    v = x.var(dim=axis, keepdim=True, unbiased=False)
    return (x - m) / torch.sqrt(v + eps)
def _scatter_add(tgt, idx, src, axis=0):
    return tgt.clone().index_add_(axis, idx, src)
def _segment_sum(src, seg, n):
    out = torch.zeros((n,) + src.shape[1:], dtype=src.dtype)
    return out.index_add_(0, seg, src)
def _pad(x, pw):
    flat = tuple(v for pair in reversed(pw) for v in pair)
    return torch.nn.functional.pad(x, flat)

kernel_name = 'standalone__mha_softmax__near_ridge'

def setup_inputs():

    _w = (lambda a: (lambda t: t.to(torch.bfloat16) if t.is_floating_point() else t)(torch.as_tensor(a)))
    B, H, Sq, Sk, D = 32, 32, 256, 256, 192
    return {
        "q": _w((lambda *s: torch.randn(*s, dtype=torch.bfloat16) * 0.8)(B, H, Sq, D)),
        "k": _w((lambda *s: torch.randn(*s, dtype=torch.bfloat16) * 0.8)(B, H, Sk, D)),
        "v": _w((lambda *s: torch.randn(*s, dtype=torch.bfloat16) * 0.05)(B, H, Sk, D)),
    }

def reference(q, k, v):
    scale = q.shape[-1] ** -0.5
    scores = torch.einsum("bhqd,bhkd->bhqk", q, k) * scale
    p = _softmax(scores, axis=-1)
    return torch.einsum("bhqk,bhkd->bhqd", p, v)
```

```python
import re

TRANS = ("v_exp_f32", "v_log_f32", "v_rcp_f32", "v_rsq_f32", "v_sqrt_f32", "v_sin_f32", "v_cos_f32")


def _regs(tok):
    tok = tok.strip()
    tok = tok.lstrip("-")
    if tok.startswith("abs(") and tok.endswith(")"):
        tok = tok[4:-1]
    if tok.startswith("|") and tok.endswith("|"):
        tok = tok[1:-1]
    m = re.fullmatch(r"([vsa])(\d+)", tok)
    if m:
        return [(m.group(1), int(m.group(2)))]
    m = re.fullmatch(r"([vsa])\[(\d+):(\d+)\]", tok)
    if m:
        return [(m.group(1), i) for i in range(int(m.group(2)), int(m.group(3)) + 1)]
    if tok in ("vcc", "exec", "m0", "scc"):
        return [(tok, 0)]
    return []


class Ins:
    __slots__ = ("text", "op", "rd", "wr", "kind", "srcc", "states", "comment")

    def __init__(self, text, comment=""):
        self.text = text
        self.comment = comment
        body = text.split(";")[0].strip()
        parts = body.split(None, 1)
        self.op = parts[0]
        ops = []
        if len(parts) > 1:
            depth = 0
            cur = ""
            for ch in parts[1]:
                if ch == "[":
                    depth += 1
                if ch == "]":
                    depth -= 1
                if ch == "," and depth == 0:
                    ops.append(cur)
                    cur = ""
                else:
                    cur += ch
            ops.append(cur)
        ops = [o.strip() for o in ops]
        if ops:
            ops[-1] = ops[-1].split()[0] if ops[-1].split() else ops[-1]
        op = self.op
        self.srcc = []
        self.states = 1
        rd, wr = [], []
        if op.endswith(":"):
            self.kind = "label"
            self.states = 0
        elif op.startswith("."):
            self.kind = "dir"
            self.states = 0
        elif op == "s_nop":
            self.kind = "nop"
            self.states = int(ops[0], 0) + 1
        elif op.startswith("v_mfma"):
            self.kind = "mfma"
            wr = _regs(ops[0])
            rd = _regs(ops[1]) + _regs(ops[2]) + _regs(ops[3])
            self.srcc = _regs(ops[3])
        elif op.startswith("ds_read"):
            self.kind = "ds"
            wr = _regs(ops[0])
            rd = _regs(ops[1])
        elif op.startswith("ds_write"):
            self.kind = "ds"
            rd = sum((_regs(o) for o in ops), [])
        elif op.startswith("buffer_load"):
            self.kind = "vmem"
            if " lds" in body:
                rd = sum((_regs(o) for o in ops), []) + [("m0", 0)]
                self.kind = "dma"
            else:
                wr = _regs(ops[0])
                rd = sum((_regs(o) for o in ops[1:]), [])
        elif op.startswith("buffer_store"):
            self.kind = "vstore"
            rd = sum((_regs(o) for o in ops), [])
            self.srcc = _regs(ops[0])
        elif op.startswith("v_permlane") and "swap" in op:
            self.kind = "permlane"
            wr = _regs(ops[0]) + _regs(ops[1])
            rd = list(wr)
        elif op.startswith("v_readfirstlane") or op.startswith("v_readlane"):
            self.kind = "readlane"
            wr = _regs(ops[0])
            rd = sum((_regs(o) for o in ops[1:]), [])
        elif op.startswith("v_cmp"):
            self.kind = "valu"
            wr = _regs(ops[0])
            rd = sum((_regs(o) for o in ops[1:]), [])
        elif op.startswith("v_"):
            self.kind = "trans" if any(op.startswith(t) for t in TRANS) else "valu"
            wr = _regs(ops[0])
            rd = sum((_regs(o) for o in ops[1:]), [])
            if op.startswith("v_fmac") or op.startswith("v_pk_fmac"):
                rd += wr
        elif op.startswith("s_load"):
            self.kind = "smem"
            wr = _regs(ops[0])
            rd = _regs(ops[1])
        elif op.startswith("s_"):
            self.kind = "salu"
            if op.startswith("s_cmp") or op.startswith("s_cbranch") or op in (
                "s_branch", "s_waitcnt", "s_barrier", "s_endpgm", "s_setprio", "s_sleep"):
                rd = sum((_regs(o) for o in ops), [])
            else:
                wr = _regs(ops[0])
                rd = sum((_regs(o) for o in ops[1:]), [])
        else:
            raise ValueError("unknown op " + text)
        self.rd = set(rd)
        self.wr = set(wr)
        self.srcc = set(self.srcc)


VALU_KINDS = ("valu", "trans", "permlane", "readlane")


def mfma_passes(op):
    if "32x32x16" in op:
        return 8
    if "16x16x32" in op:
        return 4
    raise ValueError(op)


D_LAT = {4: 8, 8: 12}
D_OVL = {4: 6, 8: 10}
C_WAR = {4: 3, 8: 7}


def need_states(p, c):
    n = 0
    pv = {r for r in p.wr if r[0] in "va"}
    ps = {r for r in p.wr if r[0] == "s" or r[0] == "vcc"}
    if p.kind in VALU_KINDS:
        if c.kind == "mfma" and pv & c.rd:
            n = max(n, 2)
        if c.kind == "permlane" and pv & c.rd:
            n = max(n, 2)
        if c.kind == "readlane" and pv & c.rd:
            n = max(n, 1)
        if p.kind == "trans" and c.kind in ("valu", "permlane", "readlane", "mfma") and pv & c.rd:
            n = max(n, 1 if c.kind != "mfma" else 2)
        if ps:
            if c.kind in ("vmem", "dma", "vstore") and ps & c.rd:
                n = max(n, 5)
            if c.kind in VALU_KINDS and ps & c.rd:
                n = max(n, 2)
            if c.kind == "salu" and ps & c.rd:
                n = max(n, 4)
    if p.kind == "mfma":
        k = mfma_passes(p.op)
        if c.kind == "mfma":
            ab = c.rd - c.srcc
            if pv & ab:
                n = max(n, D_LAT[k])
            if pv & c.srcc:
                if pv != c.srcc or p.op != c.op:
                    n = max(n, D_OVL[k])
            elif pv & c.wr:
                n = max(n, D_OVL[k])
        elif c.kind in VALU_KINDS or c.kind in ("ds", "vmem", "dma", "vstore"):
            if pv & (c.rd | c.wr):
                n = max(n, D_LAT[k])
            if c.kind in VALU_KINDS and p.srcc & c.wr:
                n = max(n, C_WAR[k])
    if p.kind == "salu" and ("m0", 0) in p.wr and c.kind == "dma":
        n = max(n, 1)
    if p.kind == "vstore" and len(p.srcc) >= 3 and p.srcc & c.wr:
        n = max(n, 2 if c.kind in VALU_KINDS else 1)
    return n


class Asm:
    def __init__(self):
        self.ins = []
        self.lgkm = []
        self.pad_count = 0

    def e(self, text, comment=""):
        i = Ins(text, comment)
        dist = 0
        need = 0
        for p in reversed(self.ins[-40:]):
            if dist >= 20:
                break
            req = need_states(p, i)
            if req > dist:
                need = max(need, req - dist)
            dist += p.states
        while need > 0:
            k = min(need, 16)
            self.ins.append(Ins("s_nop %d" % (k - 1), "hazard pad"))
            self.pad_count += 1
            need -= k
        self.ins.append(i)
        return i

    def ds(self, text, tag=None):
        self.e(text)
        self.lgkm.append(tag)

    def wait_ds(self, tag):
        idx = None
        for i, t in enumerate(self.lgkm):
            if t == tag:
                idx = i
        if idx is None:
            return
        n = len(self.lgkm) - 1 - idx
        assert n <= 15, "lgkmcnt overflow"
        self.e("s_waitcnt lgkmcnt(%d)" % n)
        self.lgkm = self.lgkm[idx + 1:]

    def wait_ds_all(self, force=False):
        if self.lgkm or force:
            self.e("s_waitcnt lgkmcnt(0)")
        self.lgkm = []

    def label(self, name):
        self.e(name + ":")

    def text(self):
        out = []
        for i in self.ins:
            if i.kind == "label":
                out.append(i.text)
            else:
                out.append("    " + i.text + (("    ; " + i.comment) if i.comment else ""))
        return "\n".join(out) + "\n"
```

```python
import math
import struct
import sys

from asmlib import Asm

NAME = "standalone__mha_softmax__near_ridge"
HEAD_BYTES = 256 * 192 * 2
TILE = 64 * 384
TOTAL = 1024 * HEAD_BYTES
NSLOT = 6
NWG = 256

HEADER = """; Kernarg layout for this problem (48 bytes, ptrs only, base s[0:1]):
; @launch grid=(%d,1,1) block=(512,1,1) lds=%d
.amdgcn_target "amdgcn-amd-amdhsa--gfx950"
.text
.globl %s_kernel
.p2align 8
.type %s_kernel,@function
%s_kernel:
"""

FOOTER = """.section .rodata,"a"
.p2align 6
.amdhsa_kernel %s_kernel
  .amdhsa_next_free_vgpr %d
  .amdhsa_next_free_sgpr %d
  .amdhsa_accum_offset %d
  .amdhsa_group_segment_fixed_size 0
  .amdhsa_kernarg_size 48
  .amdhsa_user_sgpr_count 2
  .amdhsa_user_sgpr_kernarg_segment_ptr 1
  .amdhsa_system_sgpr_workgroup_id_x 1
.end_amdhsa_kernel
"""


def f32bits(x):
    return struct.unpack("<I", struct.pack("<f", x))[0]


def vr(base, n):
    return "v[%d:%d]" % (base, base + n - 1)


def gen(ld_flags="", st_flags=""):
    a = Asm()
    e = a.e
    SQ, SK, SV, SO, SKN = 12, 16, 20, 24, 28
    S_HEAD, S_NEXT, S_WB, S_IT, S_C, S_WAVE, S_T, S_QOFF, S_WH, S_SZ = 32, 33, 34, 35, 36, 37, 38, 39, 40, 41
    srd = lambda b: "s[%d:%d]" % (b, b + 3)
    V_DMA = 1
    V_KA = 4
    V_VA = 8
    V_OA = 12
    V_M, V_L, V_T0, V_T1 = 13, 14, 15, 16
    V_SUM = 17
    V_TMP = 21
    V_O = 32
    V_Q = 32
    V_KF = 80
    V_S = 128

    ldf = (" " + ld_flags) if ld_flags else ""
    stf = (" " + st_flags) if st_flags else ""

    e("s_cmp_ge_u32 s2, %d" % NWG)
    e("s_cbranch_scc1 L_end")
    e("s_load_dwordx8 s[4:11], s[0:1], 0")
    e("v_lshrrev_b32 v21, 6, v0")
    e("v_and_b32 v0, 63, v0")
    e("v_readfirstlane_b32 s%d, v21" % S_WAVE)
    e("v_and_b32 v22, 1, v21")
    e("v_lshlrev_b32 v22, 3, v22")
    e("v_mul_u32_u24 v23, 0xc00, v21")
    for k in range(3):
        e("v_add_u32 v24, %d, v0" % (64 * k))
        e("v_mul_u32_u24 v24, 171, v24")
        e("v_lshrrev_b32 v24, 12, v24")
        e("v_add_u32 v24, v24, v22")
        e("v_bfe_u32 v25, v24, 2, 2")
        e("v_bfe_u32 v26, v24, 1, 1")
        e("v_lshl_or_b32 v25, v26, 2, v25")
        e("v_xor_b32 v25, v25, v0")
        e("v_lshl_add_u32 v%d, v25, 4, v23" % (V_DMA + k))
    e("v_and_b32 v24, 31, v0")
    e("v_lshrrev_b32 v27, 5, v0")
    e("v_bfe_u32 v25, v24, 2, 2")
    e("v_bfe_u32 v26, v24, 1, 1")
    e("v_lshl_or_b32 v25, v26, 2, v25")
    e("v_xor_b32 v25, v25, v27")
    e("v_mul_u32_u24 v26, 0x180, v24")
    for x in range(4):
        e("v_xor_b32 v28, %d, v25" % (2 * x))
        e("v_lshl_add_u32 v%d, v28, 4, v26" % (V_KA + x))
    e("v_mul_u32_u24 v28, 0x3000, v21")
    e("v_add_u32 v28, v28, v26")
    e("v_lshl_add_u32 v%d, v27, 4, v28" % V_OA)
    e("v_bfe_u32 v24, v0, 4, 1")
    e("v_bfe_u32 v25, v0, 2, 2")
    e("v_and_b32 v26, 1, v0")
    e("v_lshl_or_b32 v24, v24, 1, v26")
    e("v_lshrrev_b32 v26, 1, v25")
    e("v_lshl_or_b32 v26, v26, 2, v27")
    e("v_xor_b32 v24, v24, v26")
    e("v_lshl_add_u32 v25, v27, 2, v25")
    e("v_mul_u32_u24 v25, 0x180, v25")
    e("v_bfe_u32 v26, v0, 1, 1")
    e("v_lshl_add_u32 v25, v26, 3, v25")
    e("v_add_u32 v25, 0x%x, v25" % (2 * TILE))
    for y in range(4):
        e("v_xor_b32 v28, %d, v24" % (2 * y))
        e("v_lshl_add_u32 v%d, v28, 4, v25" % (V_VA + y))
    e("s_mul_i32 s%d, s%d, 3072" % (S_WB, S_WAVE))
    e("s_mul_i32 s%d, s%d, 12288" % (S_QOFF, S_WAVE))
    e("s_lshr_b32 s%d, s%d, 1" % (S_WH, S_WAVE))
    e("s_mul_i32 s%d, s2, %d" % (S_HEAD, HEAD_BYTES))
    e("s_mov_b32 s%d, 0x%08x" % (S_C, f32bits(192 ** -0.5 * math.log2(math.e))))
    e("s_mov_b32 s%d, %d" % (S_SZ, TOTAL))
    e("s_mov_b32 s%d, 0" % S_IT)
    e("s_waitcnt lgkmcnt(0)")
    for (b, p) in ((SQ, 4), (SK, 6), (SV, 8), (SO, 10), (SKN, 6)):
        e("s_mov_b32 s%d, s%d" % (b, p))
        e("s_and_b32 s%d, s%d, 0xffff" % (b + 1, p + 1))
        e("s_mov_b32 s%d, %d" % (b + 2, TOTAL))
        e("s_mov_b32 s%d, 0x20000" % (b + 3))

    def dma(srdb, shead, tile, slot):
        if tile:
            e("s_add_u32 s%d, s%d, %d" % (S_T, shead, tile * TILE))
            so = S_T
        else:
            so = shead
        e("s_add_u32 m0, s%d, %d" % (S_WB, slot * TILE))
        for k in range(3):
            e("buffer_load_dwordx4 v%d, %s, s%d offen offset:%d%s lds" % (V_DMA + k, srd(srdb), so, 1024 * k, ldf))

    for j in range(4):
        dma(SQ, S_HEAD, j, j)
    dma(SK, S_HEAD, 0, 4)

    a.label("L_head")
    e("s_add_u32 s%d, s%d, %d" % (S_NEXT, S_HEAD, NWG * HEAD_BYTES))
    e("s_cmp_lt_u32 s%d, 3" % S_IT)
    e("s_cselect_b32 s%d, s%d, 0" % (SQ + 2, S_SZ))
    e("s_cselect_b32 s%d, s%d, 0" % (SKN + 2, S_SZ))

    def step_begin(j):
        if j <= 4:
            e("s_waitcnt vmcnt(24)")
            e("s_cmp_lg_u32 s%d, 0" % S_IT)
            e("s_cbranch_scc1 L_w%d" % j)
            e("s_waitcnt vmcnt(12)")
            a.label("L_w%d" % j)
        else:
            e("s_waitcnt vmcnt(12)")
        e("s_barrier")
        n = j + 5
        slot = n % NSLOT
        if n < 8:
            dma(SK, S_HEAD, n - 4, slot)
        elif n < 12:
            dma(SV, S_HEAD, n - 8, slot)
        elif n < 16:
            dma(SQ, S_NEXT, n - 12, slot)
        else:
            dma(SKN, S_NEXT, 0, slot)

    for x in range(4):
        e("v_add_u32 v%d, s%d, v%d" % (V_TMP + x, S_QOFF, V_KA + x))
    for j in range(4):
        step_begin(j)
        e("s_cmp_lg_u32 s%d, %d" % (S_WH, j))
        e("s_cbranch_scc1 L_q%d" % j)
        for s in range(12):
            a.ds("ds_read_b128 %s, v%d offset:%d" % (vr(V_Q + 4 * s, 4), V_TMP + (s & 3), (s >> 2) * 128), "q")
        a.wait_ds_all()
        a.label("L_q%d" % j)

    PF = 8
    for x in range(4):
        e("v_add_u32 v%d, 0x%x, v%d" % (V_KA + x, 4 * TILE, V_KA + x))
    first_max = [True]

    def max_ops(j):
        ops = []
        b = V_S + 16 * j
        for i in range(8):
            if first_max[0]:
                ops.append("v_max_f32 v%d, v%d, v%d" % (V_M, b, b + 1))
                first_max[0] = False
            else:
                ops.append("v_max3_f32 v%d, v%d, v%d, v%d" % (V_M, V_M, b + 2 * i, b + 2 * i + 1))
        return ops

    for kt in range(4):
        j = 4 + kt
        if kt == 2:
            for x in range(4):
                e("v_subrev_u32 v%d, 0x%x, v%d" % (V_KA + x, 4 * TILE, V_KA + x))
        step_begin(j)
        slot_off = (kt & 1) * TILE
        items = [(sub, s) for sub in range(2) for s in range(12)]

        def kread(i):
            sub, s = items[i]
            fr = V_KF + 4 * (i % 12)
            a.ds("ds_read_b128 %s, v%d offset:%d" % (vr(fr, 4), V_KA + (s & 3), slot_off + sub * 12288 + (s >> 2) * 128),
                 ("k", i))

        for i in range(PF):
            kread(i)
        fill = []
        for i in range(24):
            sub, s = items[i]
            js = 2 * kt + sub
            if s == 0 and js > 0:
                fill = max_ops(js - 1)
            a.wait_ds(("k", i))
            acc = vr(V_S + 16 * js, 16)
            e("v_mfma_f32_32x32x16_bf16 %s, %s, %s, %s" % (acc, vr(V_KF + 4 * (i % 12), 4), vr(V_Q + 4 * s, 4),
                                                          "0" if s == 0 else acc))
            if i + PF < 24:
                kread(i + PF)
            if s >= 4 and fill:
                e(fill.pop(0))
        assert not fill
    for op in max_ops(7):
        e(op)

    e("v_mov_b32 v%d, v%d" % (V_T0, V_M))
    e("v_permlane32_swap_b32 v%d, v%d" % (V_M, V_T0))
    e("v_max_f32 v%d, v%d, v%d" % (V_M, V_M, V_T0))
    e("v_mul_f32 v%d, s%d, v%d" % (V_M, S_C, V_M))
    for j in range(8):
        b = V_S + 16 * j
        for half in range(2):
            r0 = b + 8 * half
            for i in range(8):
                e("v_fma_f32 v%d, v%d, s%d, -v%d" % (r0 + i, r0 + i, S_C, V_M))
            for i in range(8):
                e("v_exp_f32 v%d, v%d" % (r0 + i, r0 + i))
            for i in range(8):
                if j == 0 and half == 0 and i < 4:
                    e("v_add_f32 v%d, v%d, v%d" % (V_SUM + i, r0 + i, r0 + i + 4))
                elif j == 0 and half == 0:
                    pass
                else:
                    e("v_add_f32 v%d, v%d, v%d" % (V_SUM + (i & 3), V_SUM + (i & 3), r0 + i))
            dst = b + 4 * half
            for i in range(4):
                e("v_cvt_pk_bf16_f32 v%d, v%d, v%d" % (dst + i, r0 + 2 * i, r0 + 2 * i + 1))
    e("v_add_f32 v%d, v%d, v%d" % (V_SUM, V_SUM, V_SUM + 1))
    e("v_add_f32 v%d, v%d, v%d" % (V_SUM + 2, V_SUM + 2, V_SUM + 3))
    e("v_add_f32 v%d, v%d, v%d" % (V_L, V_SUM, V_SUM + 2))
    e("v_mov_b32 v%d, v%d" % (V_T0, V_L))
    e("v_permlane32_swap_b32 v%d, v%d" % (V_L, V_T0))
    e("v_add_f32 v%d, v%d, v%d" % (V_L, V_L, V_T0))
    e("v_rcp_f32 v%d, v%d" % (V_L, V_L))

    vfr = [V_S + 16 * j + 8 + 4 * i for j in range(8) for i in range(2)]
    VPF = 6
    for vt in range(4):
        j = 8 + vt
        if vt == 2:
            for y in range(4):
                e("v_add_u32 v%d, 0x%x, v%d" % (V_VA + y, 2 * TILE, V_VA + y))
        step_begin(j)
        slot_off = (vt & 1) * TILE
        items = [(ks, t) for ks in range(4) for t in range(6)]

        def vread(i):
            ks, t = items[i]
            fr = vfr[i % 16]
            for jj in range(2):
                y = (t & 1) * 2 + jj
                a.ds("ds_read_b64_tr_b16 %s, v%d offset:%d" % (vr(fr + 2 * jj, 2), V_VA + y,
                                                              slot_off + ks * 6144 + jj * 3072 + (t >> 1) * 128), ("v", i))

        for i in range(VPF):
            vread(i)
        for i in range(24):
            ks, t = items[i]
            u = 4 * vt + ks
            pf = V_S + 16 * (u >> 1) + 4 * (u & 1)
            a.wait_ds(("v", i))
            acc = vr(V_O + 16 * t, 16)
            e("v_mfma_f32_32x32x16_bf16 %s, %s, %s, %s" % (acc, vr(vfr[i % 16], 4), vr(pf, 4),
                                                          "0" if u == 0 else acc))
            if i + VPF < 24:
                vread(i + VPF)
    for y in range(4):
        e("v_subrev_u32 v%d, 0x%x, v%d" % (V_VA + y, 2 * TILE, V_VA + y))

    for t in range(6):
        b = V_O + 16 * t
        for i in range(16):
            e("v_mul_f32 v%d, v%d, v%d" % (b + i, b + i, V_L))
        pk = V_S + 8 * t
        for i in range(8):
            e("v_cvt_pk_bf16_f32 v%d, v%d, v%d" % (pk + i, b + 2 * i, b + 2 * i + 1))
        for s in range(2):
            e("buffer_store_dwordx4 %s, v%d, %s, s%d offen offset:%d%s" % (vr(pk + 4 * s, 4), V_OA, srd(SO), S_HEAD,
                                                                         64 * t + 32 * s, stf))
    e("s_mov_b32 s%d, s%d" % (S_HEAD, S_NEXT))
    e("s_add_u32 s%d, s%d, 1" % (S_IT, S_IT))
    e("s_cmp_lt_u32 s%d, 4" % S_IT)
    e("s_cbranch_scc1 L_head")
    e("s_waitcnt vmcnt(0)")
    a.label("L_end")
    e("s_endpgm")
    txt = HEADER % (NWG, NSLOT * TILE, NAME, NAME, NAME) + a.text() + FOOTER % (NAME, 256, 48, 256)
    return txt


if __name__ == "__main__":
    out = sys.argv[1] if len(sys.argv) > 1 else "cdna_kernels/%s.s" % NAME
    ld = sys.argv[2] if len(sys.argv) > 2 else ""
    st = sys.argv[3] if len(sys.argv) > 3 else ""
    open(out, "w").write(gen(ld, st))
    print("wrote", out)
```

```python
import re

TRANS = ("v_exp_f32", "v_log_f32", "v_rcp_f32", "v_rsq_f32", "v_sqrt_f32", "v_sin_f32", "v_cos_f32")


def _regs(tok):
    tok = tok.strip()
    tok = tok.lstrip("-")
    if tok.startswith("abs(") and tok.endswith(")"):
        tok = tok[4:-1]
    if tok.startswith("|") and tok.endswith("|"):
        tok = tok[1:-1]
    m = re.fullmatch(r"([vsa])(\d+)", tok)
    if m:
        return [(m.group(1), int(m.group(2)))]
    m = re.fullmatch(r"([vsa])\[(\d+):(\d+)\]", tok)
    if m:
        return [(m.group(1), i) for i in range(int(m.group(2)), int(m.group(3)) + 1)]
    if tok in ("vcc", "exec", "m0", "scc"):
        return [(tok, 0)]
    return []


class Ins:
    __slots__ = ("text", "op", "rd", "wr", "kind", "srcc", "states", "comment")

    def __init__(self, text, comment=""):
        self.text = text
        self.comment = comment
        body = text.split(";")[0].strip()
        parts = body.split(None, 1)
        self.op = parts[0]
        ops = []
        if len(parts) > 1:
            depth = 0
            cur = ""
            for ch in parts[1]:
                if ch == "[":
                    depth += 1
                if ch == "]":
                    depth -= 1
                if ch == "," and depth == 0:
                    ops.append(cur)
                    cur = ""
                else:
                    cur += ch
            ops.append(cur)
        ops = [o.strip() for o in ops]
        if ops:
            ops[-1] = ops[-1].split()[0] if ops[-1].split() else ops[-1]
        op = self.op
        self.srcc = []
        self.states = 1
        rd, wr = [], []
        if op.endswith(":"):
            self.kind = "label"
            self.states = 0
        elif op.startswith("."):
            self.kind = "dir"
            self.states = 0
        elif op == "s_nop":
            self.kind = "nop"
            self.states = int(ops[0], 0) + 1
        elif op.startswith("v_mfma"):
            self.kind = "mfma"
            wr = _regs(ops[0])
            rd = _regs(ops[1]) + _regs(ops[2]) + _regs(ops[3])
            self.srcc = _regs(ops[3])
        elif op.startswith("ds_read"):
            self.kind = "ds"
            wr = _regs(ops[0])
            rd = _regs(ops[1])
        elif op.startswith("ds_write"):
            self.kind = "ds"
            rd = sum((_regs(o) for o in ops), [])
        elif op.startswith("buffer_load"):
            self.kind = "vmem"
            if " lds" in body:
                rd = sum((_regs(o) for o in ops), []) + [("m0", 0)]
                self.kind = "dma"
            else:
                wr = _regs(ops[0])
                rd = sum((_regs(o) for o in ops[1:]), [])
        elif op.startswith("buffer_store"):
            self.kind = "vstore"
            rd = sum((_regs(o) for o in ops), [])
            self.srcc = _regs(ops[0])
        elif op.startswith("v_permlane") and "swap" in op:
            self.kind = "permlane"
            wr = _regs(ops[0]) + _regs(ops[1])
            rd = list(wr)
        elif op.startswith("v_readfirstlane") or op.startswith("v_readlane"):
            self.kind = "readlane"
            wr = _regs(ops[0])
            rd = sum((_regs(o) for o in ops[1:]), [])
        elif op.startswith("v_cmp"):
            self.kind = "valu"
            wr = _regs(ops[0])
            rd = sum((_regs(o) for o in ops[1:]), [])
        elif op.startswith("v_"):
            self.kind = "trans" if any(op.startswith(t) for t in TRANS) else "valu"
            wr = _regs(ops[0])
            rd = sum((_regs(o) for o in ops[1:]), [])
            if op.startswith("v_fmac") or op.startswith("v_pk_fmac"):
                rd += wr
        elif op.startswith("s_memtime") or op.startswith("s_memrealtime"):
            self.kind = "smem"
            wr = _regs(ops[0])
        elif op.startswith("s_load"):
            self.kind = "smem"
            wr = _regs(ops[0])
            rd = _regs(ops[1])
        elif op.startswith("s_"):
            self.kind = "salu"
            if op.startswith("s_cmp") or op.startswith("s_cbranch") or op in (
                "s_branch", "s_waitcnt", "s_barrier", "s_endpgm", "s_setprio", "s_sleep"):
                rd = sum((_regs(o) for o in ops), [])
            else:
                wr = _regs(ops[0])
                rd = sum((_regs(o) for o in ops[1:]), [])
        else:
            raise ValueError("unknown op " + text)
        self.rd = set(rd)
        self.wr = set(wr)
        self.srcc = set(self.srcc)


VALU_KINDS = ("valu", "trans", "permlane", "readlane")


def mfma_passes(op):
    if "32x32x16" in op:
        return 8
    if "16x16x32" in op:
        return 4
    raise ValueError(op)


D_LAT = {4: 8, 8: 12}
D_OVL = {4: 6, 8: 10}
C_WAR = {4: 3, 8: 7}


def need_states(p, c):
    n = 0
    pv = {r for r in p.wr if r[0] in "va"}
    ps = {r for r in p.wr if r[0] == "s" or r[0] == "vcc"}
    if p.kind in VALU_KINDS:
        if c.kind == "mfma" and pv & c.rd:
            n = max(n, 2)
        if c.kind == "permlane" and pv & c.rd:
            n = max(n, 2)
        if c.kind == "readlane" and pv & c.rd:
            n = max(n, 1)
        if p.kind == "trans" and c.kind in ("valu", "permlane", "readlane", "mfma") and pv & c.rd:
            n = max(n, 1 if c.kind != "mfma" else 2)
        if ps:
            if c.kind in ("vmem", "dma", "vstore") and ps & c.rd:
                n = max(n, 5)
            if c.kind in VALU_KINDS and ps & c.rd:
                n = max(n, 2)
            if c.kind == "salu" and ps & c.rd:
                n = max(n, 4)
    if p.kind == "mfma":
        k = mfma_passes(p.op)
        if c.kind == "mfma":
            ab = c.rd - c.srcc
            if pv & ab:
                n = max(n, D_LAT[k])
            if pv & c.srcc:
                if pv != c.srcc or p.op != c.op:
                    n = max(n, D_OVL[k])
            elif pv & c.wr:
                n = max(n, D_OVL[k])
        elif c.kind in VALU_KINDS or c.kind in ("ds", "vmem", "dma", "vstore"):
            if pv & (c.rd | c.wr):
                n = max(n, D_LAT[k])
            if c.kind in VALU_KINDS and p.srcc & c.wr:
                n = max(n, C_WAR[k])
    if p.kind == "salu" and ("m0", 0) in p.wr and c.kind == "dma":
        n = max(n, 1)
    if p.kind == "vstore" and len(p.srcc) >= 3 and p.srcc & c.wr:
        n = max(n, 2 if c.kind in VALU_KINDS else 1)
    return n


class Asm:
    def __init__(self):
        self.ins = []
        self.lgkm = []
        self.pad_count = 0

    def e(self, text, comment=""):
        i = Ins(text, comment)
        dist = 0
        need = 0
        for p in reversed(self.ins[-40:]):
            if dist >= 20:
                break
            req = need_states(p, i)
            if req > dist:
                need = max(need, req - dist)
            dist += p.states
        while need > 0:
            k = min(need, 16)
            self.ins.append(Ins("s_nop %d" % (k - 1), "hazard pad"))
            self.pad_count += 1
            need -= k
        self.ins.append(i)
        return i

    def ds(self, text, tag=None):
        if len(self.lgkm) >= 15:
            self.e("s_waitcnt lgkmcnt(14)", "counter cap")
            self.lgkm = self.lgkm[len(self.lgkm) - 14:]
        self.e(text)
        self.lgkm.append(tag)

    def wait_ds(self, tag):
        idx = None
        for i, t in enumerate(self.lgkm):
            if t == tag:
                idx = i
        if idx is None:
            return
        n = len(self.lgkm) - 1 - idx
        assert n <= 15, "lgkmcnt overflow"
        self.e("s_waitcnt lgkmcnt(%d)" % n)
        self.lgkm = self.lgkm[idx + 1:]

    def wait_ds_all(self, force=False):
        if self.lgkm or force:
            self.e("s_waitcnt lgkmcnt(0)")
        self.lgkm = []

    def label(self, name):
        self.e(name + ":")

    def text(self):
        out = []
        for i in self.ins:
            if i.kind == "label":
                out.append(i.text)
            else:
                out.append("    " + i.text + (("    ; " + i.comment) if i.comment else ""))
        return "\n".join(out) + "\n"
```

```python
import math
import struct
import sys

from asmlib import Asm

NAME = "standalone__mha_softmax__near_ridge"
HEAD_BYTES = 256 * 192 * 2
TILE = 64 * 384
TOTAL = 1024 * HEAD_BYTES
NSLOT = 6
NWG = 256

HEADER = """; Kernarg layout for this problem (48 bytes, ptrs only, base s[0:1]):
; @launch grid=(%d,1,1) block=(512,1,1) lds=%d
.amdgcn_target "amdgcn-amd-amdhsa--gfx950"
.text
.globl %s_kernel
.p2align 8
.type %s_kernel,@function
%s_kernel:
"""

FOOTER = """.section .rodata,"a"
.p2align 6
.amdhsa_kernel %s_kernel
  .amdhsa_next_free_vgpr %d
  .amdhsa_next_free_sgpr %d
  .amdhsa_accum_offset %d
  .amdhsa_group_segment_fixed_size 0
  .amdhsa_kernarg_size 48
  .amdhsa_user_sgpr_count 2
  .amdhsa_user_sgpr_kernarg_segment_ptr 1
  .amdhsa_system_sgpr_workgroup_id_x 1
.end_amdhsa_kernel
"""


def f32bits(x):
    return struct.unpack("<I", struct.pack("<f", x))[0]


def vr(base, n):
    return "v[%d:%d]" % (base, base + n - 1)


def gen(ld_flags="", st_flags="", opts=()):
    a = Asm()
    nocomp = "nocomp" in opts
    nostore = "nostore" in opts
    coal = "coal" in opts
    def e(text, c=""):
        if nocomp and (text.startswith("v_mfma") or text.startswith("v_exp") or text.startswith("v_fma") or text.startswith("v_max")
                       or text.startswith("v_cvt_pk") or text.startswith("v_add_f32") or text.startswith("v_mul_f32")):
            return
        return a.e(text, c)
    if nocomp:
        a.ds = lambda text, tag=None: None
    SQ, SK, SV, SO, SKN = 12, 16, 20, 24, 28
    S_HEAD, S_NEXT, S_WB, S_IT, S_C, S_WAVE, S_T, S_QOFF, S_WH, S_SZ = 32, 33, 34, 35, 36, 37, 38, 39, 40, 41
    srd = lambda b: "s[%d:%d]" % (b, b + 3)
    V_DMA = 1
    V_KA = 4
    V_VA = 8
    V_OA = 12
    V_M, V_L, V_T0, V_T1 = 13, 14, 15, 16
    V_SUM = 17
    V_TMP = 21
    V_O = 32
    V_Q = 32
    V_KF = 80
    V_S = 128

    ldf = (" " + ld_flags) if ld_flags else ""
    stf = (" " + st_flags) if st_flags else ""

    e("s_cmp_ge_u32 s2, %d" % (0 if "empty" in opts else NWG))
    e("s_cbranch_scc1 L_end")
    e("s_load_dwordx8 s[4:11], s[0:1], 0")
    e("v_lshrrev_b32 v21, 6, v0")
    e("v_and_b32 v0, 63, v0")
    e("v_readfirstlane_b32 s%d, v21" % S_WAVE)
    e("v_and_b32 v22, 1, v21")
    e("v_lshlrev_b32 v22, 3, v22")
    e("v_mul_u32_u24 v23, 0xc00, v21")
    for k in range(3):
        e("v_add_u32 v24, %d, v0" % (64 * k))
        e("v_mul_u32_u24 v24, 171, v24")
        e("v_lshrrev_b32 v24, 12, v24")
        e("v_add_u32 v24, v24, v22")
        e("v_bfe_u32 v25, v24, 2, 2")
        e("v_bfe_u32 v26, v24, 1, 1")
        e("v_lshl_or_b32 v25, v26, 2, v25")
        e("v_xor_b32 v25, v25, v0")
        e("v_lshl_add_u32 v%d, v25, 4, v23" % (V_DMA + k))
    e("v_and_b32 v24, 31, v0")
    e("v_lshrrev_b32 v27, 5, v0")
    e("v_bfe_u32 v25, v24, 2, 2")
    e("v_bfe_u32 v26, v24, 1, 1")
    e("v_lshl_or_b32 v25, v26, 2, v25")
    e("v_xor_b32 v25, v25, v27")
    e("v_mul_u32_u24 v26, 0x180, v24")
    for x in range(4):
        e("v_xor_b32 v28, %d, v25" % (2 * x))
        e("v_lshl_add_u32 v%d, v28, 4, v26" % (V_KA + x))
    e("v_mul_u32_u24 v28, 0x3000, v21")
    e("v_add_u32 v28, v28, v26")
    e("v_lshl_add_u32 v%d, v27, 4, v28" % V_OA)
    if "seg64" in opts or "seg128" in opts:
        sh = 2 if "seg64" in opts else 3
        e("v_mul_u32_u24 v28, 0x3000, v21")
        e("v_lshrrev_b32 v29, %d, v0" % sh)
        e("v_mul_u32_u24 v29, 0x180, v29")
        e("v_add_u32 v28, v28, v29")
        e("v_and_b32 v29, %d, v0" % ((1 << sh) - 1))
        e("v_lshl_add_u32 v%d, v29, 4, v28" % V_OA)
    if coal:
        e("v_mul_u32_u24 v28, 0x3000, v21")
        e("v_lshl_add_u32 v%d, v0, 4, v28" % V_OA)
    e("v_bfe_u32 v24, v0, 4, 1")
    e("v_bfe_u32 v25, v0, 2, 2")
    e("v_and_b32 v26, 1, v0")
    e("v_lshl_or_b32 v24, v24, 1, v26")
    e("v_lshrrev_b32 v26, 1, v25")
    e("v_lshl_or_b32 v26, v26, 2, v27")
    e("v_xor_b32 v24, v24, v26")
    e("v_lshl_add_u32 v25, v27, 2, v25")
    e("v_mul_u32_u24 v25, 0x180, v25")
    e("v_bfe_u32 v26, v0, 1, 1")
    e("v_lshl_add_u32 v25, v26, 3, v25")
    e("v_add_u32 v25, 0x%x, v25" % (2 * TILE))
    for y in range(4):
        e("v_xor_b32 v28, %d, v24" % (2 * y))
        e("v_lshl_add_u32 v%d, v28, 4, v25" % (V_VA + y))
    e("s_mul_i32 s%d, s%d, 3072" % (S_WB, S_WAVE))
    e("s_mul_i32 s%d, s%d, 12288" % (S_QOFF, S_WAVE))
    e("s_lshr_b32 s%d, s%d, 1" % (S_WH, S_WAVE))
    e("s_mul_i32 s%d, s2, %d" % (S_HEAD, HEAD_BYTES))
    e("s_mov_b32 s%d, 0x%08x" % (S_C, f32bits(192 ** -0.5 * math.log2(math.e))))
    e("s_mov_b32 s%d, %d" % (S_SZ, TOTAL))
    e("s_mov_b32 s%d, 0" % S_IT)
    e("s_waitcnt lgkmcnt(0)")
    for (b, p) in ((SQ, 4), (SK, 6), (SV, 8), (SO, 10), (SKN, 6)):
        e("s_mov_b32 s%d, s%d" % (b, p))
        e("s_and_b32 s%d, s%d, 0xffff" % (b + 1, p + 1))
        e("s_mov_b32 s%d, %d" % (b + 2, TOTAL))
        e("s_mov_b32 s%d, 0x20000" % (b + 3))

    stamps = "stamp" in opts
    S_ST, S_LN, S_IT16 = 44, 46, 47
    def stamp(vreg, idx):
        if not stamps:
            return
        a.e("s_memtime s[%d:%d]" % (S_ST, S_ST + 1))
        a.e("s_add_u32 s%d, s%d, %d" % (S_LN, S_IT16, idx))
        a.e("s_waitcnt lgkmcnt(0)")
        a.e("v_writelane_b32 v%d, s%d, s%d" % (vreg, S_ST, S_LN)) if False else None
        a.e("s_mov_b32 m0, s%d" % S_LN)
        a.e("v_writelane_b32 v%d, s%d, m0" % (vreg, S_ST))
    if stamps:
        e("s_load_dwordx2 s[42:43], s[0:1], 40")
        e("s_memrealtime s[48:49]")
        e("s_memtime s[50:51]")
        e("s_mov_b32 s%d, 0" % S_IT16)
        e("v_mov_b32 v29, 0")
        e("v_mov_b32 v30, 0")
        e("v_mov_b32 v31, 0")
        e("s_waitcnt lgkmcnt(0)")

    def dma(srdb, shead, tile, slot):
        if tile:
            e("s_add_u32 s%d, s%d, %d" % (S_T, shead, tile * TILE))
            so = S_T
        else:
            so = shead
        e("s_add_u32 m0, s%d, %d" % (S_WB, slot * TILE))
        for k in range(3):
            if "noload" in opts:
                continue
            e("buffer_load_dwordx4 v%d, %s, s%d offen offset:%d%s lds" % (V_DMA + k, srd(srdb), so, 1024 * k, ldf))

    for j in range(4):
        dma(SQ, S_HEAD, j, j)
    dma(SK, S_HEAD, 0, 4)

    a.label("L_head")
    e("s_add_u32 s%d, s%d, %d" % (S_NEXT, S_HEAD, NWG * HEAD_BYTES))
    e("s_cmp_lt_u32 s%d, 3" % S_IT)
    e("s_cselect_b32 s%d, s%d, 0" % (SQ + 2, S_SZ))
    e("s_cselect_b32 s%d, s%d, 0" % (SKN + 2, S_SZ))

    def step_begin(j):
        stamp(29, j)
        if j <= 4 and not nostore:
            e("s_waitcnt vmcnt(24)")
            e("s_cmp_lg_u32 s%d, 0" % S_IT)
            e("s_cbranch_scc1 L_w%d" % j)
            e("s_waitcnt vmcnt(12)")
            a.label("L_w%d" % j)
        else:
            e("s_waitcnt vmcnt(12)")
        if stamps and j in (0, 4, 8):
            stamp(31, 8 + j // 4)
        e("s_barrier")
        stamp(30, j)
        n = j + 5
        slot = n % NSLOT
        if n < 8:
            dma(SK, S_HEAD, n - 4, slot)
        elif n < 12:
            dma(SV, S_HEAD, n - 8, slot)
        elif n < 16:
            dma(SQ, S_NEXT, n - 12, slot)
        else:
            dma(SKN, S_NEXT, 0, slot)

    for x in range(4):
        e("v_add_u32 v%d, s%d, v%d" % (V_TMP + x, S_QOFF, V_KA + x))
    for j in range(4):
        step_begin(j)
        e("s_cmp_lg_u32 s%d, %d" % (S_WH, j))
        e("s_cbranch_scc1 L_q%d" % j)
        for s in range(12):
            a.ds("ds_read_b128 %s, v%d offset:%d" % (vr(V_Q + 4 * s, 4), V_TMP + (s & 3), (s >> 2) * 128), "q")
        a.wait_ds_all()
        a.label("L_q%d" % j)

    PF = 8
    for x in range(4):
        e("v_add_u32 v%d, 0x%x, v%d" % (V_KA + x, 4 * TILE, V_KA + x))
    first_max = [True]

    def max_ops(j):
        ops = []
        b = V_S + 16 * j
        for i in range(8):
            if first_max[0]:
                ops.append("v_max_f32 v%d, v%d, v%d" % (V_M, b, b + 1))
                first_max[0] = False
            else:
                ops.append("v_max3_f32 v%d, v%d, v%d, v%d" % (V_M, V_M, b + 2 * i, b + 2 * i + 1))
        return ops

    for kt in range(4):
        j = 4 + kt
        if kt == 2:
            for x in range(4):
                e("v_subrev_u32 v%d, 0x%x, v%d" % (V_KA + x, 4 * TILE, V_KA + x))
        step_begin(j)
        slot_off = (kt & 1) * TILE
        items = [(sub, s) for sub in range(2) for s in range(12)]

        def kread(i):
            sub, s = items[i]
            fr = V_KF + 4 * (i % 12)
            a.ds("ds_read_b128 %s, v%d offset:%d" % (vr(fr, 4), V_KA + (s & 3), slot_off + sub * 12288 + (s >> 2) * 128),
                 ("k", i))

        for i in range(PF):
            kread(i)
        fill = []
        for i in range(24):
            sub, s = items[i]
            js = 2 * kt + sub
            if s == 0 and js > 0:
                fill = max_ops(js - 1)
            a.wait_ds(("k", i))
            acc = vr(V_S + 16 * js, 16)
            e("v_mfma_f32_32x32x16_bf16 %s, %s, %s, %s" % (acc, vr(V_KF + 4 * (i % 12), 4), vr(V_Q + 4 * s, 4),
                                                          "0" if s == 0 else acc))
            if i + PF < 24:
                kread(i + PF)
            if s >= 4 and fill:
                e(fill.pop(0))
        assert not fill
    for op in max_ops(7):
        e(op)

    stamp(31, 0)
    e("v_mov_b32 v%d, v%d" % (V_T0, V_M))
    e("v_permlane32_swap_b32 v%d, v%d" % (V_M, V_T0))
    e("v_max_f32 v%d, v%d, v%d" % (V_M, V_M, V_T0))
    e("v_mul_f32 v%d, s%d, v%d" % (V_M, S_C, V_M))
    for j in range(8):
        b = V_S + 16 * j
        for half in range(2):
            r0 = b + 8 * half
            for i in range(8):
                e("v_fma_f32 v%d, v%d, s%d, -v%d" % (r0 + i, r0 + i, S_C, V_M))
            for i in range(8):
                e("v_exp_f32 v%d, v%d" % (r0 + i, r0 + i))
            for i in range(8):
                if j == 0 and half == 0 and i < 4:
                    e("v_add_f32 v%d, v%d, v%d" % (V_SUM + i, r0 + i, r0 + i + 4))
                elif j == 0 and half == 0:
                    pass
                else:
                    e("v_add_f32 v%d, v%d, v%d" % (V_SUM + (i & 3), V_SUM + (i & 3), r0 + i))
            dst = b + 4 * half
            for i in range(4):
                e("v_cvt_pk_bf16_f32 v%d, v%d, v%d" % (dst + i, r0 + 2 * i, r0 + 2 * i + 1))
    e("v_add_f32 v%d, v%d, v%d" % (V_SUM, V_SUM, V_SUM + 1))
    e("v_add_f32 v%d, v%d, v%d" % (V_SUM + 2, V_SUM + 2, V_SUM + 3))
    e("v_add_f32 v%d, v%d, v%d" % (V_L, V_SUM, V_SUM + 2))
    e("v_mov_b32 v%d, v%d" % (V_T0, V_L))
    e("v_permlane32_swap_b32 v%d, v%d" % (V_L, V_T0))
    e("v_add_f32 v%d, v%d, v%d" % (V_L, V_L, V_T0))
    e("v_rcp_f32 v%d, v%d" % (V_L, V_L))

    vfr = [V_S + 16 * j + 8 + 4 * i for j in range(8) for i in range(2)]
    VPF = 6
    for vt in range(4):
        j = 8 + vt
        if vt == 2:
            for y in range(4):
                e("v_add_u32 v%d, 0x%x, v%d" % (V_VA + y, 2 * TILE, V_VA + y))
        step_begin(j)
        slot_off = (vt & 1) * TILE
        items = [(ks, t) for ks in range(4) for t in range(6)]

        def vread(i):
            ks, t = items[i]
            fr = vfr[i % 16]
            for jj in range(2):
                y = (t & 1) * 2 + jj
                a.ds("ds_read_b64_tr_b16 %s, v%d offset:%d" % (vr(fr + 2 * jj, 2), V_VA + y,
                                                              slot_off + ks * 6144 + jj * 3072 + (t >> 1) * 128), ("v", i))

        for i in range(VPF):
            vread(i)
        for i in range(24):
            ks, t = items[i]
            u = 4 * vt + ks
            pf = V_S + 16 * (u >> 1) + 4 * (u & 1)
            a.wait_ds(("v", i))
            acc = vr(V_O + 16 * t, 16)
            e("v_mfma_f32_32x32x16_bf16 %s, %s, %s, %s" % (acc, vr(vfr[i % 16], 4), vr(pf, 4),
                                                          "0" if u == 0 else acc))
            if i + VPF < 24:
                vread(i + VPF)
    for y in range(4):
        e("v_subrev_u32 v%d, 0x%x, v%d" % (V_VA + y, 2 * TILE, V_VA + y))

    stamp(31, 1)
    for t in range(6):
        b = V_O + 16 * t
        for i in range(16):
            e("v_mul_f32 v%d, v%d, v%d" % (b + i, b + i, V_L))
        pk = V_S + 8 * t
        for i in range(8):
            e("v_cvt_pk_bf16_f32 v%d, v%d, v%d" % (pk + i, b + 2 * i, b + 2 * i + 1))
        for s in range(2):
            if nostore:
                continue
            if "seg64" in opts or "seg128" in opts:
                n = 2 * t + s
                off = (s * 6144 + t * 64) if "seg64" in opts else ((n % 4) * 3072 + (n // 4) * 128)
                e("s_add_u32 s%d, s%d, %d" % (S_T, S_HEAD, off))
                e("buffer_store_dwordx4 %s, v%d, %s, s%d offen%s" % (vr(pk + 4 * s, 4), V_OA, srd(SO), S_T, stf))
                continue
            if coal:
                e("s_add_u32 s%d, s%d, %d" % (S_T, S_HEAD, (2 * t + s) * 1024))
                e("buffer_store_dwordx4 %s, v%d, %s, s%d offen%s" % (vr(pk + 4 * s, 4), V_OA, srd(SO), S_T, stf))
                continue
            e("buffer_store_dwordx4 %s, v%d, %s, s%d offen offset:%d%s" % (vr(pk + 4 * s, 4), V_OA, srd(SO), S_HEAD,
                                                                         64 * t + 32 * s, stf))
    stamp(31, 2)
    if stamps:
        e("s_add_u32 s%d, s%d, 16" % (S_IT16, S_IT16))
    e("s_mov_b32 s%d, s%d" % (S_HEAD, S_NEXT))
    e("s_add_u32 s%d, s%d, 1" % (S_IT, S_IT))
    e("s_cmp_lt_u32 s%d, 4" % S_IT)
    e("s_cbranch_scc1 L_head")
    e("s_waitcnt vmcnt(0)")
    if stamps:
        e("s_memrealtime s[52:53]")
        e("s_memtime s[54:55]")
        e("s_waitcnt lgkmcnt(0)")
        for i, sr in enumerate((48, 50, 52, 54)):
            e("v_writelane_b32 v31, s%d, %d" % (sr, 12 + i))
        e("s_mov_b32 s56, s42")
        e("s_and_b32 s57, s43, 0xffff")
        e("s_mov_b32 s58, 0x1000000")
        e("s_mov_b32 s59, 0x20000")
        e("s_lshl_b32 s60, s2, 3")
        e("s_add_u32 s60, s60, s%d" % S_WAVE)
        e("s_lshl_b32 s60, s60, 10")
        e("v_lshlrev_b32 v28, 2, v0")
        e("buffer_store_dword v29, v28, s[56:59], s60 offen")
        e("buffer_store_dword v30, v28, s[56:59], s60 offen offset:256")
        e("buffer_store_dword v31, v28, s[56:59], s60 offen offset:512")
        e("s_waitcnt vmcnt(0)")
    a.label("L_end")
    e("s_endpgm")
    txt = HEADER % (NWG, NSLOT * TILE, NAME, NAME, NAME) + a.text() + FOOTER % (NAME, 256, 64, 256)
    return txt


if __name__ == "__main__":
    out = sys.argv[1] if len(sys.argv) > 1 else "cdna_kernels/%s.s" % NAME
    ld = sys.argv[2] if len(sys.argv) > 2 else ""
    st = sys.argv[3] if len(sys.argv) > 3 else ""
    opts = sys.argv[4].split(",") if len(sys.argv) > 4 else ()
    open(out, "w").write(gen(ld, st, opts))
    print("wrote", out)
```

```python
import sys
from asmlib import Asm
from gen1 import HEADER, FOOTER, NAME, TOTAL, HEAD_BYTES
TILE = 24576
def gen(pattern, ldf="nt", stf="sc1", window=15, headmap="stride", barrier=False, nwg=256, nheads=4, rot=0):
    a = Asm(); e = a.e
    e("s_cmp_ge_u32 s2, %d" % nwg)
    e("s_cbranch_scc1 L_end")
    e("s_load_dwordx8 s[4:11], s[0:1], 0")
    e("v_lshrrev_b32 v21, 6, v0")
    e("v_and_b32 v0, 63, v0")
    e("v_readfirstlane_b32 s37, v21")
    e("v_mul_u32_u24 v23, 0xc00, v21")
    e("v_lshl_add_u32 v1, v0, 4, v23")
    e("s_waitcnt lgkmcnt(0)")
    for (b, p) in ((12, 4), (16, 6), (20, 8), (24, 10)):
        e("s_mov_b32 s%d, s%d" % (b, p)); e("s_and_b32 s%d, s%d, 0xffff" % (b + 1, p + 1))
        e("s_mov_b32 s%d, %d" % (b + 2, TOTAL)); e("s_mov_b32 s%d, 0x20000" % (b + 3))
    if headmap == "stride":
        e("s_mul_i32 s32, s2, %d" % HEAD_BYTES); hs = nwg * HEAD_BYTES
    else:
        e("s_mul_i32 s32, s2, %d" % (nheads * HEAD_BYTES)); hs = HEAD_BYTES
    e("s_mul_i32 s34, s37, 3072")
    if rot:
        e("s_lshr_b32 s44, s2, %d" % (rot - 1))
        for t in range(4):
            e("s_add_u32 s45, s44, %d" % t)
            e("s_and_b32 s45, s45, 3")
            e("s_mul_i32 s%d, s45, %d" % (40 + t, TILE))
            e("s_add_u32 s%d, s%d, s32" % (40 + t, 40 + t))
    e("s_load_dwordx2 s[46:47], s[0:1], 40")
    e("s_memrealtime s[48:49]")
    e("s_waitcnt lgkmcnt(0)")
    seq = []
    L = [[("L", h, t) for t in range(12)] for h in range(nheads)]
    S = [[("S", h, t) for t in range(4)] for h in range(nheads)]
    if pattern == "burst":
        allL = sum(L, [])
        pos = 0
        for h in range(nheads):
            end = min(len(allL), 12 * (h + 1) + 5)
            seq += allL[pos:end]; pos = end
            seq += S[h]
    elif pattern == "mix":
        allL = sum(L, [])
        pos = 17
        seq += allL[:pos]
        for h in range(nheads):
            for t in range(4):
                seq.append(S[h][t])
                seq += allL[pos:pos + 3]; pos += 3
    elif pattern == "sep":
        seq = sum(L, []) + sum(S, [])
    elif pattern == "ld":
        seq = sum(L, [])
    elif pattern == "st":
        seq = sum(S, [])
    cnt = 0
    slot = 0
    for (kind, h, t) in seq:
        if kind == "L":
            srd = 12 + 4 * (t // 4)
            if rot:
                e("s_add_u32 s38, s%d, %d" % (40 + t % 4, h * hs))
            else:
                e("s_add_u32 s38, s32, %d" % (h * hs + (t % 4) * TILE))
            e("s_add_u32 m0, s34, %d" % (slot * TILE)); slot = (slot + 1) % 6
            for k in range(3):
                e("buffer_load_dwordx4 v1, s[%d:%d], s38 offen offset:%d %s lds" % (srd, srd + 3, 1024 * k, ldf))
        else:
            e("s_add_u32 s38, s32, %d" % (h * hs + t * TILE))
            for k in range(3):
                e("buffer_store_dwordx4 v[4:7], v1, s[24:27], s38 offen offset:%d %s" % (1024 * k, stf))
        e("s_waitcnt vmcnt(%d)" % (window - 3))
        if barrier:
            e("s_barrier")
    e("s_waitcnt vmcnt(0)")
    e("s_memrealtime s[52:53]")
    e("s_waitcnt lgkmcnt(0)")
    e("v_mov_b32 v31, 0")
    e("v_writelane_b32 v31, s48, 12")
    e("v_writelane_b32 v31, s52, 14")
    e("s_mov_b32 s56, s46"); e("s_and_b32 s57, s47, 0xffff"); e("s_mov_b32 s58, 0x1000000"); e("s_mov_b32 s59, 0x20000")
    e("s_lshl_b32 s60, s2, 3"); e("s_add_u32 s60, s60, s37"); e("s_lshl_b32 s60, s60, 10")
    e("v_lshlrev_b32 v28, 2, v0")
    e("buffer_store_dword v31, v28, s[56:59], s60 offen offset:512")
    e("s_waitcnt vmcnt(0)")
    a.label("L_end")
    e("s_endpgm")
    return HEADER % (nwg, 147456, NAME, NAME, NAME) + a.text() + FOOTER % (NAME, 256, 64, 256)
if __name__ == "__main__":
    w = lambda n, t: open("../var/" + n, "w").write(t)
    w("u_burst.s", gen("burst", barrier=True))
    w("u_burst_rot1.s", gen("burst", barrier=True, rot=1))
    w("u_burst_rot4.s", gen("burst", barrier=True, rot=4))
    w("u_ld.s", gen("ld", barrier=True))
    w("u_ld_rot1.s", gen("ld", barrier=True, rot=1))
    w("u_ld_rot4.s", gen("ld", barrier=True, rot=4))
    w("u_mix_rot1.s", gen("mix", barrier=True, rot=1))
```

```python
import math
import struct
import sys

from asmlib import Asm

NAME = "standalone__mha_softmax__near_ridge"
HEAD_BYTES = 256 * 192 * 2
TILE = 64 * 384
TOTAL = 1024 * HEAD_BYTES
NSLOT = 6
NWG = 256
LDS_BYTES = 163840
SPARE = NSLOT * TILE

HEADER = """; MHA softmax forward, B*H=1024 heads, Sq=Sk=256, D=192, bf16.
; @launch grid=(%d,1,1) block=(512,1,1) lds=%d
.amdgcn_target "amdgcn-amd-amdhsa--gfx950"
.text
.globl %s_kernel
.p2align 8
.type %s_kernel,@function
%s_kernel:
"""

FOOTER = """.section .rodata,"a"
.p2align 6
.amdhsa_kernel %s_kernel
  .amdhsa_next_free_vgpr %d
  .amdhsa_next_free_sgpr %d
  .amdhsa_accum_offset %d
  .amdhsa_group_segment_fixed_size 0
  .amdhsa_kernarg_size 48
  .amdhsa_user_sgpr_count 2
  .amdhsa_user_sgpr_kernarg_segment_ptr 1
  .amdhsa_system_sgpr_workgroup_id_x 1
.end_amdhsa_kernel
"""


def f32bits(x):
    return struct.unpack("<I", struct.pack("<f", x))[0]


def vr(base, n):
    return "v[%d:%d]" % (base, base + n - 1)


DEFAULT_SCHED = {0: 4, 1: 5, 2: 6, 4: 7, 5: 8, 6: 9, 7: 10, "sm": 11, 8: 12, 9: 13, 10: 14, 11: 15}


def gen(ldf="nt", stf="sc1", opts=(), sched=None, prev_body=None):
    sched = dict(DEFAULT_SCHED if sched is None else sched)
    a = Asm()
    e = a.e
    stamps = "stamp" in opts
    SQ, SK, SV, SO = 12, 16, 20, 24
    S_HEAD, S_NEXT, S_WB, S_IT, S_C, S_WAVE, S_T, S_QOFF, S_WH, S_SZ = 32, 33, 34, 35, 36, 37, 38, 39, 40, 41
    S_R1, S_R2, S_R3 = 28, 29, 30
    defer = [int(o[5:]) for o in opts if o.startswith("defer")]
    defer = defer[0] if defer else 0
    SOP = 64
    S_P0 = 68
    srd = lambda b: "s[%d:%d]" % (b, b + 3)
    V_DMA = 1
    V_KA = 4
    V_VA = 8
    V_OA = 12
    V_M, V_L, V_T0 = 13, 14, 15
    V_SUM = 16
    V_EW, V_ER = 20, 21
    V_ST = 22
    V_X = 24
    V_O = 32
    V_Q = 32
    V_KF = 80
    V_S = 128
    T = 128

    ldf = (" " + ldf) if ldf else ""
    stf = (" " + stf) if stf else ""
    vm = []

    e("s_cmp_ge_u32 s2, %d" % NWG)
    e("s_cbranch_scc1 L_end")
    e("s_load_dwordx8 s[4:11], s[0:1], 0")
    t = lambda i: "v%d" % (T + i)
    e("v_lshrrev_b32 %s, 6, v0" % t(0))
    e("v_and_b32 v0, 63, v0")
    e("v_readfirstlane_b32 s%d, %s" % (S_WAVE, t(0)))
    e("v_and_b32 %s, 1, %s" % (t(1), t(0)))
    e("v_lshlrev_b32 %s, 3, %s" % (t(1), t(1)))
    e("v_mul_u32_u24 %s, 0xc00, %s" % (t(2), t(0)))
    for k in range(3):
        e("v_add_u32 %s, %d, v0" % (t(3), 64 * k))
        e("v_mul_u32_u24 %s, 171, %s" % (t(3), t(3)))
        e("v_lshrrev_b32 %s, 12, %s" % (t(3), t(3)))
        e("v_add_u32 %s, %s, %s" % (t(3), t(3), t(1)))
        e("v_bfe_u32 %s, %s, 2, 2" % (t(4), t(3)))
        e("v_bfe_u32 %s, %s, 1, 1" % (t(5), t(3)))
        e("v_lshl_or_b32 %s, %s, 2, %s" % (t(4), t(5), t(4)))
        e("v_xor_b32 %s, %s, v0" % (t(4), t(4)))
        e("v_lshl_add_u32 v%d, %s, 4, %s" % (V_DMA + k, t(4), t(2)))
    e("s_mul_i32 s%d, s%d, 3072" % (S_WB, S_WAVE))
    e("s_mul_i32 s%d, s2, %d" % (S_HEAD, HEAD_BYTES))
    e("s_mov_b32 s%d, %d" % (S_SZ, TOTAL))
    e("s_waitcnt lgkmcnt(0)")
    for (b, p) in ((SQ, 4), (SK, 6), (SV, 8), (SO, 10)):
        e("s_mov_b32 s%d, s%d" % (b, p))
        e("s_and_b32 s%d, s%d, 0xffff" % (b + 1, p + 1))
        e("s_mov_b32 s%d, %d" % (b + 2, TOTAL))
        e("s_mov_b32 s%d, 0x20000" % (b + 3))

    if defer:
        e("s_mov_b32 s%d, s10" % SOP)
        e("s_and_b32 s%d, s11, 0xffff" % (SOP + 1))
        e("s_mov_b32 s%d, 0" % (SOP + 2))
        e("s_mov_b32 s%d, 0x20000" % (SOP + 3))
        for i in range(4):
            e("s_mov_b32 s%d, 0" % (S_P0 + i))
    dma_state = {}

    def dma_setup(n, first=False):
        h = S_NEXT if n >= 12 else S_HEAD
        nn = n % 12
        srdb = (SQ, SK, SV)[nn // 4]
        tile = nn % 4
        if tile:
            e("s_add_u32 s%d, s%d, %d" % (S_T, h, tile * TILE))
            so = S_T
        else:
            so = h
        e("s_add_u32 m0, s%d, %d" % (S_WB, (n % NSLOT) * TILE))
        dma_state["cur"] = (n, srdb, so)

    def dma_issue(k):
        n, srdb, so = dma_state["cur"]
        e("buffer_load_dwordx4 v%d, %s, s%d offen offset:%d%s lds" % (V_DMA + k, srd(srdb), so, 1024 * k, ldf))
        vm.append(("T", n))

    def dma_all(n):
        dma_setup(n)
        for k in range(3):
            dma_issue(k)

    pro_tiles = sorted(v for v in sched.values() if v >= 12)
    for n in pro_tiles:
        dma_all(n - 12)
    pro_vm = [("T", n + 12) for (_, n) in vm]
    vm.clear()

    e("v_and_b32 %s, 31, v0" % t(3))
    e("v_lshrrev_b32 %s, 5, v0" % t(6))
    e("v_bfe_u32 %s, %s, 2, 2" % (t(4), t(3)))
    e("v_bfe_u32 %s, %s, 1, 1" % (t(5), t(3)))
    e("v_lshl_or_b32 %s, %s, 2, %s" % (t(4), t(5), t(4)))
    e("v_xor_b32 %s, %s, %s" % (t(4), t(4), t(6)))
    e("v_mul_u32_u24 %s, 0x180, %s" % (t(5), t(3)))
    for x in range(4):
        e("v_xor_b32 %s, %d, %s" % (t(7), 2 * x, t(4)))
        e("v_lshl_add_u32 v%d, %s, 4, %s" % (V_KA + x, t(7), t(5)))
    e("v_lshlrev_b32 %s, 11, %s" % (t(7), t(0)))
    e("v_lshl_add_u32 %s, %s, 7, %s" % (t(7), t(3), t(7)))
    e("v_mov_b32 %s, 0x%x" % (t(8), SPARE))
    e("v_mov_b32 %s, 0x%x" % (t(9), 4 * TILE - 2048))
    e("v_cmp_gt_u32 vcc, 16, %s" % t(3))
    e("s_nop 1")
    e("v_cndmask_b32 %s, %s, %s, vcc" % (t(8), t(9), t(8)))
    e("v_add_u32 %s, %s, %s" % (t(7), t(7), t(8)))
    e("v_and_b32 %s, 7, %s" % (t(8), t(3)))
    e("v_xor_b32 %s, %s, %s" % (t(8), t(8), t(6)))
    e("v_lshl_add_u32 v%d, %s, 4, %s" % (V_EW, t(8), t(7)))
    e("v_lshrrev_b32 %s, 3, v0" % t(7))
    e("v_and_b32 %s, 7, v0" % t(8))
    e("v_xor_b32 %s, %s, %s" % (t(9), t(8), t(7)))
    e("v_lshlrev_b32 %s, 4, %s" % (t(9), t(9)))
    e("v_lshl_add_u32 %s, %s, 7, %s" % (t(9), t(7), t(9)))
    e("v_lshl_add_u32 %s, %s, 11, %s" % (t(9), t(0), t(9)))
    e("v_add_u32 v%d, 0x%x, %s" % (V_ER, 4 * TILE, t(9)))
    e("v_mul_u32_u24 %s, 0x3000, %s" % (t(9), t(0)))
    e("v_mul_u32_u24 %s, 0x180, %s" % (t(7), t(7)))
    e("v_add_u32 %s, %s, %s" % (t(9), t(9), t(7)))
    e("v_lshl_add_u32 v%d, %s, 4, %s" % (V_OA, t(8), t(9)))
    e("v_bfe_u32 %s, v0, 4, 1" % t(3))
    e("v_bfe_u32 %s, v0, 2, 2" % t(4))
    e("v_and_b32 %s, 1, v0" % t(5))
    e("v_lshl_or_b32 %s, %s, 1, %s" % (t(3), t(3), t(5)))
    e("v_lshrrev_b32 %s, 1, %s" % (t(5), t(4)))
    e("v_lshl_or_b32 %s, %s, 2, %s" % (t(5), t(5), t(6)))
    e("v_xor_b32 %s, %s, %s" % (t(3), t(3), t(5)))
    e("v_lshl_add_u32 %s, %s, 2, %s" % (t(4), t(6), t(4)))
    e("v_mul_u32_u24 %s, 0x180, %s" % (t(4), t(4)))
    e("v_bfe_u32 %s, v0, 1, 1" % t(5))
    e("v_lshl_add_u32 %s, %s, 3, %s" % (t(4), t(5), t(4)))
    e("v_add_u32 %s, 0x%x, %s" % (t(4), 2 * TILE, t(4)))
    for y in range(4):
        e("v_xor_b32 %s, %d, %s" % (t(7), 2 * y, t(3)))
        e("v_lshl_add_u32 v%d, %s, 4, %s" % (V_VA + y, t(7), t(4)))
    e("s_mul_i32 s%d, s%d, 12288" % (S_QOFF, S_WAVE))
    e("s_lshr_b32 s%d, s%d, 1" % (S_WH, S_WAVE))
    e("s_mov_b32 s%d, 0x%08x" % (S_C, f32bits(192 ** -0.5 * math.log2(math.e))))
    e("s_mov_b32 s%d, 0" % S_IT)
    if "prio" in opts:
        e("s_cmp_ge_u32 s%d, 4" % S_WAVE)
        e("s_cbranch_scc0 L_prio")
        e("s_setprio 1")
        a.label("L_prio")

    S_ST, S_LN, S_IT16, S_M0 = 44, 46, 47, 61

    def stamp(vreg, idx):
        if not stamps:
            return
        a.wait_ds_all()
        e("s_memtime s[%d:%d]" % (S_ST, S_ST + 1))
        e("s_add_u32 s%d, s%d, %d" % (S_LN, S_IT16, idx))
        e("s_mov_b32 s%d, m0" % S_M0)
        e("s_waitcnt lgkmcnt(0)")
        e("s_mov_b32 m0, s%d" % S_LN)
        e("v_writelane_b32 v%d, s%d, m0" % (vreg, S_ST))
        e("s_mov_b32 m0, s%d" % S_M0)
    VS0, VS1, VS2 = V_ST, V_ST + 1, 0
    if stamps:
        e("s_load_dwordx2 s[42:43], s[0:1], 40")
        e("s_memrealtime s[48:49]")
        e("s_memtime s[50:51]")
        e("s_mov_b32 s%d, 0" % S_IT16)
        e("v_lshlrev_b32 v31, 2, v0")
        e("v_readfirstlane_b32 s62, v31")
        e("s_waitcnt lgkmcnt(0)")

    a.label("L_head")
    e("s_add_u32 s%d, s%d, %d" % (S_NEXT, S_HEAD, NWG * HEAD_BYTES))
    e("s_add_u32 s%d, s%d, 3072" % (S_R1, S_HEAD))
    e("s_add_u32 s%d, s%d, 6144" % (S_R2, S_HEAD))
    e("s_add_u32 s%d, s%d, 9216" % (S_R3, S_HEAD))
    e("s_cmp_lt_u32 s%d, 3" % S_IT)
    e("s_cselect_b32 s%d, s%d, 0" % (SQ + 2, S_SZ))
    assert max(sched.values()) < 16

    def count_after(lst, tag):
        idx = max(i for i, x in enumerate(lst) if x == tag)
        return len(lst) - 1 - idx

    def step_begin(j):
        stamp(VS0, j)
        if ("T", j) in vm:
            e("s_waitcnt vmcnt(%d)" % count_after(vm, ("T", j)))
        else:
            n_first = count_after(pro_vm + vm, ("T", j + 12))
            n_steady = count_after((prev_body or pro_vm) + vm, ("T", j + 12))
            assert n_steady <= 63
            e("s_waitcnt vmcnt(%d)" % n_steady)
            if n_first != n_steady:
                assert n_first < n_steady
                e("s_cmp_lg_u32 s%d, 0" % S_IT)
                e("s_cbranch_scc1 L_w%d" % j)
                e("s_waitcnt vmcnt(%d)" % n_first)
                a.label("L_w%d" % j)
        e("s_barrier")
        stamp(VS1, j)

    for x in range(4):
        e("v_add_u32 v%d, s%d, v%d" % (V_X + x, S_QOFF, V_KA + x))
    for j in range(4):
        step_begin(j)
        e("s_cmp_lg_u32 s%d, %d" % (S_WH, j))
        e("s_cbranch_scc1 L_q%d" % j)
        for s in range(12):
            a.ds("ds_read_b128 %s, v%d offset:%d" % (vr(V_Q + 4 * s, 4), V_X + (s & 3), (s >> 2) * 128), "q")
        a.lgkm = []
        a.label("L_q%d" % j)
        if j in sched:
            dma_all(sched[j])
        a.wait_ds_all(force=True)

    PF = 8
    for x in range(4):
        e("v_add_u32 v%d, 0x%x, v%d" % (V_KA + x, 4 * TILE, V_KA + x))
    first_max = [True]

    def max_ops(j):
        ops = []
        b = V_S + 16 * j
        for i in range(8):
            if first_max[0]:
                ops.append("v_max_f32 v%d, v%d, v%d" % (V_M, b, b + 1))
                first_max[0] = False
            else:
                ops.append("v_max3_f32 v%d, v%d, v%d, v%d" % (V_M, V_M, b + 2 * i, b + 2 * i + 1))
        return ops

    DMA_AT = (1, 9, 17)
    ST_AT = (4, 7, 13, 20)

    def erd(c, rb):
        if c >= 3 - defer:
            return V_S + 64 + 16 * (c - (3 - defer)) + 4 * rb
        return [V_S + 32, V_S + 36, V_S + 48, V_S + 52][rb]

    def deferred_store(c, rb):
        e("buffer_store_dwordx4 %s, v%d, %s, s%d offen offset:%d%s" % (
            vr(erd(c, rb), 4), V_OA, srd(SOP), S_P0 + rb, 128 * c, stf))
        vm.append(("S",))

    for kt in range(4):
        j = 4 + kt
        if kt == 2:
            for x in range(4):
                e("v_subrev_u32 v%d, 0x%x, v%d" % (V_KA + x, 4 * TILE, V_KA + x))
        step_begin(j)
        slot_off = (kt & 1) * TILE
        items = [(sub, s) for sub in range(2) for s in range(12)]

        def kread(i):
            sub, s = items[i]
            fr = V_KF + 4 * (i % 12)
            a.ds("ds_read_b128 %s, v%d offset:%d" % (vr(fr, 4), V_KA + (s & 3), slot_off + sub * 12288 + (s >> 2) * 128),
                 ("k", i))

        for i in range(PF):
            kread(i)
        if j in sched:
            dma_setup(sched[j])
        fill = []
        for i in range(24):
            sub, s = items[i]
            js = 2 * kt + sub
            if s == 0 and js > 0:
                fill = max_ops(js - 1)
            a.wait_ds(("k", i))
            acc = vr(V_S + 16 * js, 16)
            e("v_mfma_f32_32x32x16_bf16 %s, %s, %s, %s" % (acc, vr(V_KF + 4 * (i % 12), 4), vr(V_Q + 4 * s, 4),
                                                          "0" if s == 0 else acc))
            if i + PF < 24:
                kread(i + PF)
            if s >= 4 and fill:
                e(fill.pop(0))
            if j in sched and i in DMA_AT:
                dma_issue(DMA_AT.index(i))
            if kt < defer and i in ST_AT:
                deferred_store(3 - defer + kt, ST_AT.index(i))
        assert not fill
    stamp(VS2, 0)
    if "sm" in sched:
        dma_setup(sched["sm"])
        dma_issue(0)
    for op in max_ops(7):
        e(op)

    e("v_mov_b32 v%d, v%d" % (V_T0, V_M))
    e("v_permlane32_swap_b32 v%d, v%d" % (V_M, V_T0))
    e("v_max_f32 v%d, v%d, v%d" % (V_M, V_M, V_T0))
    e("v_mul_f32 v%d, s%d, v%d" % (V_M, S_C, V_M))

    def exp_ops(j):
        ops = []
        b = V_S + 16 * j
        for half in range(2):
            r0 = b + 8 * half
            for i in range(8):
                ops.append("v_fma_f32 v%d, v%d, s%d, -v%d" % (r0 + i, r0 + i, S_C, V_M))
            for i in range(8):
                ops.append("v_exp_f32 v%d, v%d" % (r0 + i, r0 + i))
            for i in range(8):
                if j == 0 and half == 0:
                    if i < 4:
                        ops.append("v_add_f32 v%d, v%d, v%d" % (V_SUM + i, r0 + i, r0 + i + 4))
                else:
                    ops.append("v_add_f32 v%d, v%d, v%d" % (V_SUM + (i & 3), V_SUM + (i & 3), r0 + i))
            dst = b + 4 * half
            for i in range(4):
                ops.append("v_cvt_pk_bf16_f32 v%d, v%d, v%d" % (dst + i, r0 + 2 * i, r0 + 2 * i + 1))
        return ops

    for jj, j in enumerate((0, 1)):
        for op in exp_ops(j):
            e(op)
        if "sm" in sched:
            dma_issue(1 + jj)

    def lsum_ops():
        return ["v_add_f32 v%d, v%d, v%d" % (V_SUM, V_SUM, V_SUM + 1),
                "v_add_f32 v%d, v%d, v%d" % (V_SUM + 2, V_SUM + 2, V_SUM + 3),
                "v_add_f32 v%d, v%d, v%d" % (V_L, V_SUM, V_SUM + 2),
                "v_mov_b32 v%d, v%d" % (V_T0, V_L),
                "v_permlane32_swap_b32 v%d, v%d" % (V_L, V_T0),
                "v_add_f32 v%d, v%d, v%d" % (V_L, V_L, V_T0),
                "v_rcp_f32 v%d, v%d" % (V_L, V_L)]

    vfr = [V_S + 8, V_S + 12, V_S + 24, V_S + 28, V_X, V_X + 4]
    NVF = len(vfr)
    VPF = 5
    EPK = [V_S + 32 + 8, V_S + 48 + 8]
    V_EWX = V_S + 96 + 8

    def epi_chunk_ops(c):
        ops = []
        for tt in range(2):
            b = V_O + 16 * (2 * c + tt)
            pk = EPK[tt]
            for i in range(8):
                ops.append(("v", "v_mul_f32 v%d, v%d, v%d" % (b + 2 * i, b + 2 * i, V_L)))
                ops.append(("v", "v_mul_f32 v%d, v%d, v%d" % (b + 2 * i + 1, b + 2 * i + 1, V_L)))
                ops.append(("v", "v_cvt_pk_bf16_f32 v%d, v%d, v%d" % (pk + i, b + 2 * i, b + 2 * i + 1)))
                if i in (3, 7):
                    s = i // 4
                    ops.append(("w", "ds_write_b128 v%d, %s" % (V_EWX + 2 * tt + s, vr(pk + 4 * s, 4))))
        for rb in range(4):
            off = (49152 + rb * 1024) if rb < 2 else ((rb - 2) * 1024)
            ops.append(("r", "ds_read_b128 %s, v%d offset:%d" % (vr(erd(c, rb), 4), V_ER, off), ("e", c, rb)))
        for rb in range(4):
            if c >= 3 - defer:
                continue
            so = (S_HEAD, S_R1, S_R2, S_R3)[rb]
            ops.append(("s", "buffer_store_dwordx4 %s, v%d, %s, s%d offen offset:%d%s" % (
                vr(erd(c, rb), 4), V_OA, srd(SO), so, 128 * c, stf), ("e", c, rb)))
        return ops

    def emit_epi(op):
        if op[0] == "v":
            e(op[1])
        elif op[0] == "w":
            a.ds(op[1], "ew")
        elif op[0] == "r":
            a.ds(op[1], op[2])
        elif op[0] == "s":
            a.wait_ds(op[2])
            e(op[1])
            vm.append(("S",))

    for vt in range(4):
        j = 8 + vt
        if vt == 2:
            for y in range(4):
                e("v_add_u32 v%d, 0x%x, v%d" % (V_VA + y, 2 * TILE, V_VA + y))
        step_begin(j)
        slot_off = (vt & 1) * TILE
        last = vt == 3
        if last:
            items = [(ks, t_) for tp in range(3) for ks in range(4) for t_ in (2 * tp, 2 * tp + 1)]
        else:
            items = [(ks, t_) for ks in range(4) for t_ in range(6)]

        def vread(i):
            ks, t_ = items[i]
            fr = vfr[i % NVF]
            for jj in range(2):
                y = (t_ & 1) * 2 + jj
                a.ds("ds_read_b64_tr_b16 %s, v%d offset:%d" % (vr(fr + 2 * jj, 2), V_VA + y,
                                                              slot_off + ks * 6144 + jj * 3072 + (t_ >> 1) * 128), ("v", i))

        for i in range(VPF):
            vread(i)
        if j in sched:
            dma_setup(sched[j])
        if not last:
            fill = [("v", op) for op in exp_ops(2 * vt + 2) + exp_ops(2 * vt + 3)]
            if vt == 2:
                fill += [("v", op) for op in lsum_ops()]
            per = [len(fill) * (i + 1) // 24 - len(fill) * i // 24 for i in range(24)]
        else:
            fill = [("v", "v_xor_b32 v%d, %d, v%d" % (V_EWX + k, 32 * k, V_EW)) for k in range(4)]
            per = [4] + [0] * 23
        for i in range(24):
            ks, t_ = items[i]
            u = 4 * vt + ks
            pf = V_S + 16 * (u >> 1) + 4 * (u & 1)
            a.wait_ds(("v", i))
            acc = vr(V_O + 16 * t_, 16)
            e("v_mfma_f32_32x32x16_bf16 %s, %s, %s, %s" % (acc, vr(vfr[i % NVF], 4), vr(pf, 4),
                                                          "0" if u == 0 else acc))
            if i + VPF < 24:
                vread(i + VPF)
            if last and i in (9, 17):
                c = (i - 9) // 8
                fill += epi_chunk_ops(c)
                n = len(fill)
                span = 8 if i == 9 else 7
                for q in range(span):
                    per[i + q] = n * (q + 1) // span - n * q // span
            for _ in range(per[i]):
                emit_epi(fill.pop(0))
            if j in sched and i in (DMA_AT if not last else (1, 4, 7)):
                dma_issue((DMA_AT if not last else (1, 4, 7)).index(i))
        assert not fill, fill
    stamp(VS2, 1)
    for y in range(4):
        e("v_subrev_u32 v%d, 0x%x, v%d" % (V_VA + y, 2 * TILE, V_VA + y))
    for op in epi_chunk_ops(2):
        emit_epi(op)
    a.wait_ds_all()
    if defer:
        e("s_mov_b32 s%d, s%d" % (SOP + 2, S_SZ))
        for i, r in enumerate((S_HEAD, S_R1, S_R2, S_R3)):
            e("s_mov_b32 s%d, s%d" % (S_P0 + i, r))
    stamp(VS2, 2)
    if stamps:
        e("s_add_u32 s%d, s%d, 16" % (S_IT16, S_IT16))
    e("s_mov_b32 s%d, s%d" % (S_HEAD, S_NEXT))
    e("s_add_u32 s%d, s%d, 1" % (S_IT, S_IT))
    e("s_cmp_lt_u32 s%d, 4" % S_IT)
    e("s_cbranch_scc1 L_head")
    body_vm = list(vm)
    for c in range(3 - defer, 3):
        for rb in range(4):
            deferred_store(c, rb)
    vm[:] = body_vm
    e("s_waitcnt vmcnt(0)")
    if stamps:
        e("s_memrealtime s[52:53]")
        e("s_memtime s[54:55]")
        e("s_waitcnt lgkmcnt(0)")
        for i, sr in enumerate((48, 50, 52, 54)):
            e("v_writelane_b32 v%d, s%d, %d" % (VS2, sr, 12 + i))
        e("s_mov_b32 s56, s42")
        e("s_and_b32 s57, s43, 0xffff")
        e("s_mov_b32 s58, 0x1000000")
        e("s_mov_b32 s59, 0x20000")
        e("s_lshl_b32 s60, s2, 3")
        e("s_add_u32 s60, s60, s%d" % S_WAVE)
        e("s_lshl_b32 s60, s60, 10")
        e("v_mbcnt_lo_u32_b32 v28, -1, 0")
        e("v_mbcnt_hi_u32_b32 v28, -1, v28")
        e("v_lshlrev_b32 v28, 2, v28")
        e("buffer_store_dword v%d, v28, s[56:59], s60 offen" % VS0)
        e("buffer_store_dword v%d, v28, s[56:59], s60 offen offset:256" % VS1)
        e("buffer_store_dword v%d, v28, s[56:59], s60 offen offset:512" % VS2)
        e("s_waitcnt vmcnt(0)")
    a.label("L_end")
    e("s_endpgm")
    if prev_body is None:
        return gen(ldf.strip(), stf.strip(), opts, sched, prev_body=list(vm))
    assert prev_body == vm
    txt = HEADER % (NWG, LDS_BYTES, NAME, NAME, NAME) + a.text() + FOOTER % (NAME, 256, 80, 256)
    return txt


if __name__ == "__main__":
    out = sys.argv[1] if len(sys.argv) > 1 else "cdna_kernels/%s.s" % NAME
    ld = sys.argv[2] if len(sys.argv) > 2 else "nt"
    st = sys.argv[3] if len(sys.argv) > 3 else "sc1"
    opts = sys.argv[4].split(",") if len(sys.argv) > 4 else ()
    open(out, "w").write(gen(ld, st, opts))
    print("wrote", out)
```

```python
import re

TRANS = ("v_exp_f32", "v_log_f32", "v_rcp_f32", "v_rsq_f32", "v_sqrt_f32", "v_sin_f32", "v_cos_f32")


def _regs(tok):
    tok = tok.strip()
    tok = tok.lstrip("-")
    if tok.startswith("abs(") and tok.endswith(")"):
        tok = tok[4:-1]
    if tok.startswith("|") and tok.endswith("|"):
        tok = tok[1:-1]
    m = re.fullmatch(r"([vsa])(\d+)", tok)
    if m:
        return [(m.group(1), int(m.group(2)))]
    m = re.fullmatch(r"([vsa])\[(\d+):(\d+)\]", tok)
    if m:
        return [(m.group(1), i) for i in range(int(m.group(2)), int(m.group(3)) + 1)]
    if tok in ("vcc", "exec", "m0", "scc"):
        return [(tok, 0)]
    return []


class Ins:
    __slots__ = ("text", "op", "rd", "wr", "kind", "srcc", "states", "comment")

    def __init__(self, text, comment=""):
        self.text = text
        self.comment = comment
        body = text.split(";")[0].strip()
        parts = body.split(None, 1)
        self.op = parts[0]
        ops = []
        if len(parts) > 1:
            depth = 0
            cur = ""
            for ch in parts[1]:
                if ch == "[":
                    depth += 1
                if ch == "]":
                    depth -= 1
                if ch == "," and depth == 0:
                    ops.append(cur)
                    cur = ""
                else:
                    cur += ch
            ops.append(cur)
        ops = [o.strip() for o in ops]
        if ops:
            ops[-1] = ops[-1].split()[0] if ops[-1].split() else ops[-1]
        op = self.op
        self.srcc = []
        self.states = 1
        rd, wr = [], []
        if op.endswith(":"):
            self.kind = "label"
            self.states = 0
        elif op.startswith("."):
            self.kind = "dir"
            self.states = 0
        elif op == "s_nop":
            self.kind = "nop"
            self.states = int(ops[0], 0) + 1
        elif op.startswith("v_mfma"):
            self.kind = "mfma"
            wr = _regs(ops[0])
            rd = _regs(ops[1]) + _regs(ops[2]) + _regs(ops[3])
            self.srcc = _regs(ops[3])
        elif op.startswith("ds_read"):
            self.kind = "ds"
            wr = _regs(ops[0])
            rd = _regs(ops[1])
        elif op.startswith("ds_write"):
            self.kind = "ds"
            rd = sum((_regs(o) for o in ops), [])
        elif op.startswith("buffer_load"):
            self.kind = "vmem"
            if " lds" in body:
                rd = sum((_regs(o) for o in ops), []) + [("m0", 0)]
                self.kind = "dma"
            else:
                wr = _regs(ops[0])
                rd = sum((_regs(o) for o in ops[1:]), [])
        elif op.startswith("buffer_store"):
            self.kind = "vstore"
            rd = sum((_regs(o) for o in ops), [])
            self.srcc = _regs(ops[0])
        elif op.startswith("v_permlane") and "swap" in op:
            self.kind = "permlane"
            wr = _regs(ops[0]) + _regs(ops[1])
            rd = list(wr)
        elif op.startswith("v_readfirstlane") or op.startswith("v_readlane"):
            self.kind = "readlane"
            wr = _regs(ops[0])
            rd = sum((_regs(o) for o in ops[1:]), [])
        elif op.startswith("v_cmp"):
            self.kind = "valu"
            wr = _regs(ops[0])
            rd = sum((_regs(o) for o in ops[1:]), [])
        elif op.startswith("v_"):
            self.kind = "trans" if any(op.startswith(t) for t in TRANS) else "valu"
            wr = _regs(ops[0])
            rd = sum((_regs(o) for o in ops[1:]), [])
            if op.startswith("v_fmac") or op.startswith("v_pk_fmac"):
                rd += wr
        elif op.startswith("s_memtime") or op.startswith("s_memrealtime"):
            self.kind = "smem"
            wr = _regs(ops[0])
        elif op.startswith("s_load"):
            self.kind = "smem"
            wr = _regs(ops[0])
            rd = _regs(ops[1])
        elif op.startswith("s_"):
            self.kind = "salu"
            if op.startswith("s_cmp") or op.startswith("s_cbranch") or op in (
                "s_branch", "s_waitcnt", "s_barrier", "s_endpgm", "s_setprio", "s_sleep"):
                rd = sum((_regs(o) for o in ops), [])
            else:
                wr = _regs(ops[0])
                rd = sum((_regs(o) for o in ops[1:]), [])
        else:
            raise ValueError("unknown op " + text)
        self.rd = set(rd)
        self.wr = set(wr)
        self.srcc = set(self.srcc)


VALU_KINDS = ("valu", "trans", "permlane", "readlane")


def mfma_passes(op):
    if "32x32x16" in op:
        return 8
    if "16x16x32" in op:
        return 4
    raise ValueError(op)


D_LAT = {4: 8, 8: 12}
D_OVL = {4: 6, 8: 10}
C_WAR = {4: 3, 8: 7}


def need_states(p, c):
    n = 0
    pv = {r for r in p.wr if r[0] in "va"}
    ps = {r for r in p.wr if r[0] == "s" or r[0] == "vcc"}
    if p.kind in VALU_KINDS:
        if c.kind == "mfma" and pv & c.rd:
            n = max(n, 2)
        if c.kind == "permlane" and pv & c.rd:
            n = max(n, 2)
        if c.kind == "readlane" and pv & c.rd:
            n = max(n, 1)
        if p.kind == "trans" and c.kind in ("valu", "permlane", "readlane", "mfma") and pv & c.rd:
            n = max(n, 1 if c.kind != "mfma" else 2)
        if ps:
            if c.kind in ("vmem", "dma", "vstore") and ps & c.rd:
                n = max(n, 5)
            if c.kind in VALU_KINDS and ps & c.rd:
                n = max(n, 2)
            if c.kind == "salu" and ps & c.rd:
                n = max(n, 4)
    if p.kind == "mfma":
        k = mfma_passes(p.op)
        if c.kind == "mfma":
            ab = c.rd - c.srcc
            if pv & ab:
                n = max(n, D_LAT[k])
            if pv & c.srcc:
                if pv != c.srcc or p.op != c.op:
                    n = max(n, D_OVL[k])
            elif pv & c.wr:
                n = max(n, D_OVL[k])
        elif c.kind in VALU_KINDS or c.kind in ("ds", "vmem", "dma", "vstore"):
            if pv & (c.rd | c.wr):
                n = max(n, D_LAT[k])
            if c.kind in VALU_KINDS and p.srcc & c.wr:
                n = max(n, C_WAR[k])
    if p.kind == "salu" and ("m0", 0) in p.wr and c.kind == "dma":
        n = max(n, 1)
    if p.kind == "vstore" and len(p.srcc) >= 3 and p.srcc & c.wr:
        n = max(n, 2 if c.kind in VALU_KINDS else 1)
    return n


class Asm:
    def __init__(self):
        self.ins = []
        self.lgkm = []
        self.pad_count = 0
        self.skip = ()

    def e(self, text, comment=""):
        if self.skip and text.startswith(self.skip):
            return None
        i = Ins(text, comment)
        dist = 0
        need = 0
        for p in reversed(self.ins[-40:]):
            if dist >= 20:
                break
            req = need_states(p, i)
            if req > dist:
                need = max(need, req - dist)
            dist += p.states
        while need > 0:
            k = min(need, 16)
            self.ins.append(Ins("s_nop %d" % (k - 1), "hazard pad"))
            self.pad_count += 1
            need -= k
        self.ins.append(i)
        return i

    def ds(self, text, tag=None):
        if self.skip and text.startswith(self.skip):
            return
        if len(self.lgkm) >= 15:
            self.e("s_waitcnt lgkmcnt(14)", "counter cap")
            self.lgkm = self.lgkm[len(self.lgkm) - 14:]
        self.e(text)
        self.lgkm.append(tag)

    def wait_ds(self, tag):
        idx = None
        for i, t in enumerate(self.lgkm):
            if t == tag:
                idx = i
        if idx is None:
            return
        n = len(self.lgkm) - 1 - idx
        assert n <= 15, "lgkmcnt overflow"
        self.e("s_waitcnt lgkmcnt(%d)" % n)
        self.lgkm = self.lgkm[idx + 1:]

    def wait_ds_all(self, force=False):
        if self.lgkm or force:
            self.e("s_waitcnt lgkmcnt(0)")
        self.lgkm = []

    def label(self, name):
        self.e(name + ":")

    def text(self):
        out = []
        for i in self.ins:
            if i.kind == "label":
                out.append(i.text)
            else:
                out.append("    " + i.text + (("    ; " + i.comment) if i.comment else ""))
        return "\n".join(out) + "\n"
```

```python
import math
import struct
import sys

from asmlib import Asm

NAME = "standalone__mha_softmax__near_ridge"
HEAD_BYTES = 256 * 192 * 2
CH = 32768
TOTAL = 1024 * HEAD_BYTES
NSLOT = 5
NWG = 256
LDS_BYTES = 163840

HEADER = """; MHA softmax forward, B*H=1024 heads, Sq=Sk=256, D=192, bf16.
; @launch grid=(%d,1,1) block=(512,1,1) lds=%d
.amdgcn_target "amdgcn-amd-amdhsa--gfx950"
.text
.globl %s_kernel
.p2align 8
.type %s_kernel,@function
%s_kernel:
"""

FOOTER = """.section .rodata,"a"
.p2align 6
.amdhsa_kernel %s_kernel
  .amdhsa_next_free_vgpr %d
  .amdhsa_next_free_sgpr %d
  .amdhsa_accum_offset %d
  .amdhsa_group_segment_fixed_size 0
  .amdhsa_kernarg_size 48
  .amdhsa_user_sgpr_count 2
  .amdhsa_user_sgpr_kernarg_segment_ptr 1
  .amdhsa_system_sgpr_workgroup_id_x 1
.end_amdhsa_kernel
"""


def f32bits(x):
    return struct.unpack("<I", struct.pack("<f", x))[0]


def vr(base, n):
    return "v[%d:%d]" % (base, base + n - 1)


ORDER = [(0, 0), (1, 0), (0, 1), (1, 1), (0, 2), (1, 2), (2, 0), (2, 1), (2, 2)]
ISSUE = {0: [4], 1: [5, 6], 2: [7, 8], 3: [9, 10], 4: [11], 5: [12]}
NEED = {0: [0, 1], 1: [2, 3], 2: [4, 5], 3: [6], 4: [7], 5: [8]}


def optval(opts, key, default):
    for o in opts:
        if o.startswith(key + "="):
            return o[len(key) + 1:]
    return default


def gen(ldf="nt", stf="sc1", opts=(), prev_body=None):
    a = Asm()
    e = a.e
    stamps = "stamp" in opts
    msum = "msum" in opts
    SQ, SK, SV, SO = 12, 16, 20, 24
    S_HEAD, S_NEXT, S_PREV, S_WB, S_IT, S_C, S_WAVE, S_T = 32, 33, 34, 35, 36, 37, 38, 39
    S_WR, S_WEND, S_RD, S_SZ, S_RQ, S_RK = 40, 41, 42, 43, 28, 29
    srd = lambda b: "s[%d:%d]" % (b, b + 3)
    V_DMA = 1
    V_KQ = 5
    V_VB = 7
    V_WA = 11
    V_EWB = 15
    V_LIN = 16
    V_M = 17
    V_L = 19
    V_SUM = 21
    V_EW = 21
    V_T0 = 25
    V_ER = 25
    V_ONE = 26
    V_ST = 30
    V_OA, V_OB = 32, 64
    V_Q = 96
    KFR = [64 + 4 * i for i in range(8)] + [112 + 4 * i for i in range(4)]
    VFR = [96 + 4 * i for i in range(8)]
    V_S = 128
    T = 128

    ldf = (" " + ldf) if ldf else ""
    stf = (" " + stf) if stf else ""
    vm = []

    e("s_cmp_ge_u32 s2, %d" % NWG)
    e("s_cbranch_scc1 L_end")
    e("s_load_dwordx8 s[4:11], s[0:1], 0")
    t = lambda i: "v%d" % (T + i)
    e("v_lshrrev_b32 %s, 6, v0" % t(0))
    e("v_and_b32 v0, 63, v0")
    e("v_readfirstlane_b32 s%d, %s" % (S_WAVE, t(0)))
    e("v_lshrrev_b32 %s, 3, v0" % t(1))
    e("v_lshl_add_u32 %s, %s, 5, %s" % (t(2), t(0), t(1)))
    e("v_mul_u32_u24 %s, 0x180, %s" % (t(2), t(2)))
    e("v_and_b32 %s, 7, v0" % t(3))
    e("v_xor_b32 %s, %s, %s" % (t(3), t(3), t(1)))
    e("v_lshl_add_u32 v%d, %s, 4, %s" % (V_DMA, t(3), t(2)))
    for k in range(1, 4):
        e("v_add_u32 v%d, 0x%x, v%d" % (V_DMA + k, 2048 * k, V_DMA))
    e("s_lshl_b32 s%d, s%d, 12" % (S_WB, S_WAVE))
    e("s_mul_i32 s%d, s2, %d" % (S_HEAD, HEAD_BYTES))
    e("s_mov_b32 s%d, %d" % (S_SZ, TOTAL))
    e("s_mov_b32 s%d, s%d" % (S_WR, S_WB))
    e("s_add_u32 s%d, s%d, %d" % (S_WEND, S_WB, NSLOT * CH))
    e("s_waitcnt lgkmcnt(0)")
    for (b, p) in ((SQ, 4), (SK, 6), (SV, 8), (SO, 10)):
        e("s_mov_b32 s%d, s%d" % (b, p))
        e("s_and_b32 s%d, s%d, 0xffff" % (b + 1, p + 1))
        e("s_mov_b32 s%d, %d" % (b + 2, TOTAL if b != SO else 0))
        e("s_mov_b32 s%d, 0x20000" % (b + 3))

    dma_state = {}

    def dma_setup(n):
        h = S_NEXT if n >= 9 else S_HEAD
        tens, c = ORDER[n % 9]
        if c:
            e("s_add_u32 s%d, s%d, %d" % (S_T, h, 128 * c))
            so = S_T
        else:
            so = h
        e("s_mov_b32 m0, s%d" % S_WR)
        e("s_add_u32 s%d, s%d, %d" % (S_WR, S_WR, CH))
        e("s_cmp_eq_u32 s%d, s%d" % (S_WR, S_WEND))
        e("s_cselect_b32 s%d, s%d, s%d" % (S_WR, S_WB, S_WR))
        dma_state["cur"] = (n, (SQ, SK, SV)[tens], so)

    def dma_issue(k):
        n, srdb, so = dma_state["cur"]
        e("buffer_load_dwordx4 v%d, %s, s%d offen offset:%d%s lds" % (V_DMA + k, srd(srdb), so, 1024 * k, ldf))
        vm.append(("T", n))

    for n in range(4):
        dma_setup(n)
        for k in range(4):
            dma_issue(k)
    pro_vm = [("T", n + 9) for (_, n) in vm]
    vm.clear()

    e("v_and_b32 %s, 15, v0" % t(1))
    e("v_lshrrev_b32 %s, 4, v0" % t(2))
    e("v_and_b32 %s, 7, v0" % t(3))
    e("v_xor_b32 %s, %s, %s" % (t(4), t(2), t(3)))
    e("v_lshlrev_b32 %s, 7, %s" % (t(5), t(1)))
    e("v_lshl_add_u32 v%d, %s, 4, %s" % (V_KQ, t(4), t(5)))
    e("v_xor_b32 v%d, 64, v%d" % (V_KQ + 1, V_KQ))
    e("v_lshrrev_b32 %s, 1, %s" % (t(4), t(2)))
    e("v_xor_b32 %s, %s, %s" % (t(4), t(4), t(3)))
    e("v_lshl_add_u32 %s, %s, 4, %s" % (t(4), t(4), t(5)))
    e("v_and_b32 %s, 1, %s" % (t(6), t(2)))
    e("v_lshl_add_u32 v%d, %s, 3, %s" % (V_EWB, t(6), t(4)))
    e("v_lshlrev_b32 v%d, 4, v0" % V_LIN)
    e("v_lshrrev_b32 %s, 2, v0" % t(1))
    e("v_and_b32 %s, 7, %s" % (t(3), t(1)))
    e("v_bfe_u32 %s, v0, 1, 1" % t(4))
    e("v_xor_b32 %s, %s, %s" % (t(4), t(4), t(3)))
    e("v_lshlrev_b32 %s, 7, %s" % (t(5), t(1)))
    e("v_lshl_add_u32 %s, %s, 4, %s" % (t(4), t(4), t(5)))
    e("v_and_b32 %s, 1, v0" % t(6))
    e("v_lshl_add_u32 v%d, %s, 3, %s" % (V_VB, t(6), t(4)))
    for tt in range(1, 4):
        e("v_xor_b32 v%d, %d, v%d" % (V_VB + tt, 32 * tt, V_VB))
    if msum:
        for i in range(4):
            e("v_mov_b32 v%d, 0x3f803f80" % (V_ONE + i))
    e("s_mov_b32 s%d, 0x%08x" % (S_C, f32bits(192 ** -0.5 * math.log2(math.e))))
    e("s_mov_b32 s%d, 0" % S_IT)
    e("s_mov_b32 s%d, 0" % S_RD)
    e("s_mov_b32 s%d, 0" % S_PREV)
    if "prio" in opts:
        e("s_cmp_ge_u32 s%d, 4" % S_WAVE)
        e("s_cbranch_scc0 L_prio")
        e("s_setprio 1")
        a.label("L_prio")

    S_ST, S_LN, S_IT16, S_M0 = 44, 46, 47, 61

    def stamp(vreg, idx, rt=False):
        if not stamps:
            return
        a.wait_ds_all()
        e("%s s[%d:%d]" % ("s_memrealtime" if rt else "s_memtime", S_ST, S_ST + 1))
        e("s_add_u32 s%d, s%d, %d" % (S_LN, S_IT16, idx))
        e("s_mov_b32 s%d, m0" % S_M0)
        e("s_waitcnt lgkmcnt(0)")
        e("s_mov_b32 m0, s%d" % S_LN)
        e("v_writelane_b32 v%d, s%d, m0" % (vreg, S_ST))
        e("s_mov_b32 m0, s%d" % S_M0)
    VS0, VS1, VS2 = V_ST, V_ST + 1, 0
    if stamps:
        e("s_load_dwordx2 s[62:63], s[0:1], 40")
        e("s_memrealtime s[48:49]")
        e("s_memtime s[50:51]")
        e("s_mov_b32 s%d, 0" % S_IT16)
        e("s_waitcnt lgkmcnt(0)")

    sk = []
    if "nomfma" in opts:
        sk += ["v_mfma"]
    if "noexp" in opts:
        sk += ["v_exp", "v_fma", "v_add_f32", "v_cvt", "v_max", "v_mul_f32", "v_rcp", "v_permlane"]
    a.skip = tuple(sk)

    def count_after(lst, tag):
        idx = max(i for i, x in enumerate(lst) if x == tag)
        return len(lst) - 1 - idx

    def rd_inc():
        e("s_add_u32 s%d, s%d, %d" % (S_RD, S_RD, CH))
        e("s_cmp_eq_u32 s%d, %d" % (S_RD, NSLOT * CH))
        e("s_cselect_b32 s%d, 0, s%d" % (S_RD, S_RD))

    def step_begin(j):
        stamp(VS0, j)
        stamp(VS1, j, True)
        n = NEED[j][-1]
        if ("T", n) in vm:
            e("s_waitcnt vmcnt(%d)" % count_after(vm, ("T", n)))
        else:
            n_first = count_after(pro_vm + vm, ("T", n + 9))
            n_steady = count_after((prev_body or pro_vm) + vm, ("T", n + 9))
            assert n_steady <= 63
            e("s_waitcnt vmcnt(%d)" % n_steady)
            if n_first != n_steady:
                assert n_first < n_steady
                e("s_cmp_lg_u32 s%d, 0" % S_IT)
                e("s_cbranch_scc1 L_w%d" % j)
                e("s_waitcnt vmcnt(%d)" % n_first)
                a.label("L_w%d" % j)
        e("s_barrier")
        stamp(VS0, 8 + j)

    def sblk(kb, u):
        return V_S + (2 * kb + u) * 8

    def stile(kt, u):
        return sblk(kt >> 1, u) + 4 * (kt & 1)

    def epi_ops(buf, c, so):
        ops = [("v", "v_add_u32 v%d, s%d, v%d" % (V_EW, S_WR, V_EWB)),
               ("v", "v_add_u32 v%d, s%d, v%d" % (V_ER, S_WR, V_LIN))]
        for tt in range(1, 4):
            ops.append(("v", "v_xor_b32 v%d, %d, v%d" % (V_EW + tt, 32 * tt, V_EW)))
        for tt in range(4):
            for u in range(2):
                b = buf + (2 * tt + u) * 4
                for i in range(4):
                    ops.append(("v", "v_mul_f32 v%d, v%d, v%d" % (b + i, b + i, V_L + u)))
                for i in range(2):
                    ops.append(("v", "v_cvt_pk_bf16_f32 v%d, v%d, v%d" % (b + i, b + 2 * i, b + 2 * i + 1)))
                ops.append(("w", "ds_write_b64 v%d, %s offset:%d" % (V_EW + tt, vr(b, 2), 2048 * u)))
        rd = [("r", "ds_read_b128 %s, v%d offset:%d" % (vr(buf + 16 + 4 * k, 4), V_ER, 1024 * k), ("e", k)) for k in range(4)]
        st = [("s", "buffer_store_dwordx4 %s, v%d, %s, s%d offen offset:%d%s" % (
            vr(buf + 16 + 4 * k, 4), V_DMA + k, srd(SO), so, 1024 * k + 128 * c, stf), ("e", k)) for k in range(4)]
        return ops, rd, st

    def emit(op):
        if op[0] == "v":
            e(op[1])
        elif op[0] == "w":
            a.ds(op[1], "ew")
        elif op[0] == "r":
            a.ds(op[1], op[2])
        elif op[0] == "s":
            a.wait_ds(op[2])
            e(op[1])
            vm.append(("S",))
        elif op[0] == "setup":
            dma_setup(op[1])
        elif op[0] == "dma":
            dma_issue(op[1])
        elif op[0] == "salu":
            e(op[1])

    def place(slots, pos, ops):
        for p, op in zip(pos, ops):
            slots.setdefault(p, []).append(op)

    D8 = [int(x) for x in optval(opts, "d8", "1:9:17:25:33:41:49:57").split(":")]
    EP_V = int(optval(opts, "epv", "4"))
    ST4 = [int(x) for x in optval(opts, "st4", "22:28:34:40").split(":")]
    D4 = [int(x) for x in optval(opts, "d4", "46:51:56:61").split(":")]

    def side_ops(j):
        slots = {}
        iss = ISSUE[j]
        if len(iss) == 2:
            for q, n in enumerate(iss):
                place(slots, [D8[4 * q]], [("setup", n)])
                place(slots, D8[4 * q:4 * q + 4], [("dma", k) for k in range(4)])
        else:
            buf, c, so = {0: (V_OA, 2, S_PREV), 4: (V_OA, 0, S_HEAD), 5: (V_OB, 1, S_HEAD)}[j]
            ops, rd, st = epi_ops(buf, c, so)
            place(slots, [i // EP_V for i in range(len(ops))], ops)
            last = (len(ops) - 1) // EP_V
            place(slots, [last + 1] * 4, rd)
            assert ST4[0] > last + 1
            place(slots, ST4, st)
            if j == 0:
                place(slots, [ST4[-1]], [("salu", "s_mov_b32 s%d, s%d" % (SO + 2, S_SZ))])
            place(slots, [D4[0]], [("setup", iss[0])])
            place(slots, D4, [("dma", k) for k in range(4)])
        return slots

    def exp_ops(kb, u):
        ops = []
        b = sblk(kb, u)
        for i in range(8):
            ops.append("v_fma_f32 v%d, v%d, s%d, -v%d" % (b + i, b + i, S_C, V_M + u))
        for i in range(8):
            ops.append("v_exp_f32 v%d, v%d" % (b + i, b + i))
        if not msum:
            for i in range(8):
                sr = V_SUM + 2 * u + (i & 1)
                if kb == 0 and i < 4:
                    if i < 2:
                        ops.append("v_add_f32 v%d, v%d, v%d" % (sr, b + i, b + i + 2))
                else:
                    ops.append("v_add_f32 v%d, v%d, v%d" % (sr, sr, b + i))
        for i in range(4):
            ops.append("v_cvt_pk_bf16_f32 v%d, v%d, v%d" % (b + i, b + 2 * i, b + 2 * i + 1))
        return ops

    def xlane(reg, op):
        return ["v_mov_b32 v%d, v%d" % (V_T0, reg),
                "v_permlane32_swap_b32 v%d, v%d" % (reg, V_T0),
                "%s v%d, v%d, v%d" % (op, reg, reg, V_T0),
                "v_mov_b32 v%d, v%d" % (V_T0, reg),
                "v_permlane16_swap_b32 v%d, v%d" % (reg, V_T0),
                "%s v%d, v%d, v%d" % (op, reg, reg, V_T0)]

    a.label("L_head")
    e("s_add_u32 s%d, s%d, %d" % (S_NEXT, S_HEAD, NWG * HEAD_BYTES))

    PF = int(optval(opts, "kpf", "8"))
    for c in range(3):
        j = c
        e("s_add_u32 s%d, s%d, s%d" % (S_RQ, S_RD, S_WB))
        rd_inc()
        for kk in range(2):
            e("v_add_u32 v%d, s%d, v%d" % (V_WA + 2 + kk, S_RQ, V_KQ + kk))
            e("v_add_u32 v%d, s%d, v%d" % (V_WA + kk, S_RD, V_KQ + kk))
        rd_inc()
        step_begin(j)
        items = [(kt, kk) for kt in range(16) for kk in range(2)]

        def kread(i):
            kt, kk = items[i]
            a.ds("ds_read_b128 %s, v%d offset:%d" % (vr(KFR[i % 12], 4), V_WA + kk, kt * 2048), ("k", i))

        def qread(u, kk):
            a.ds("ds_read_b128 %s, v%d offset:%d" % (vr(V_Q + 8 * kk + 4 * u, 4), V_WA + 2 + kk, u * 2048), ("q", u, kk))

        qread(0, 0)
        kread(0)
        qread(1, 0)
        qread(0, 1)
        kread(1)
        qread(1, 1)
        for i in range(2, PF):
            kread(i)
        slots = side_ops(j)
        maxq = []
        for i in range(32):
            kt, kk = items[i]
            for u in range(2):
                m = 2 * i + u
                a.wait_ds(("k", i))
                a.wait_ds(("q", u, kk))
                acc = vr(stile(kt, u), 4)
                e("v_mfma_f32_16x16x32_bf16 %s, %s, %s, %s" % (acc, vr(KFR[i % 12], 4), vr(V_Q + 8 * kk + 4 * u, 4),
                                                              "0" if (c == 0 and kk == 0) else acc))
                if u == 1 and i + PF < 32:
                    kread(i + PF)
                if c == 2:
                    if kk == 1:
                        b = stile(kt, u)
                        if kt == 0:
                            maxq.append((m + 4, "v_max_f32 v%d, v%d, v%d" % (V_M + u, b, b + 1)))
                        else:
                            maxq.append((m + 4, "v_max3_f32 v%d, v%d, v%d, v%d" % (V_M + u, V_M + u, b, b + 1)))
                        maxq.append((m + 4, "v_max3_f32 v%d, v%d, v%d, v%d" % (V_M + u, V_M + u, b + 2, b + 3)))
                    if maxq and maxq[0][0] <= m:
                        e(maxq.pop(0)[1])
                for op in slots.pop(m, []):
                    emit(op)
        assert not slots
        for _, op in maxq:
            e(op)
    stamp(VS2, 0)
    for u in range(2):
        for op in xlane(V_M + u, "v_max_f32"):
            e(op)
        e("v_mul_f32 v%d, s%d, v%d" % (V_M + u, S_C, V_M + u))
    PRE = int(optval(opts, "pre", "1"))
    for kb in range(PRE):
        for u in range(2):
            for op in exp_ops(kb, u):
                e(op)
    e("s_cmp_lt_u32 s%d, 3" % S_IT)
    e("s_cselect_b32 s%d, s%d, 0" % (SQ + 2, S_SZ))
    e("s_cselect_b32 s%d, s%d, 0" % (SK + 2, S_SZ))

    VPF = int(optval(opts, "vpf", "6"))
    LACC = [sblk(0, 0) + 4, sblk(0, 1) + 4]
    for c in range(3):
        j = 3 + c
        buf = V_OB if c == 1 else V_OA
        for tt in range(4):
            e("v_add_u32 v%d, s%d, v%d" % (V_WA + tt, S_RD, V_VB + tt))
        rd_inc()
        step_begin(j)
        items = [(kb, tt) for kb in range(8) for tt in range(4)]

        def vread(i):
            kb, tt = items[i]
            for jj in range(2):
                a.ds("ds_read_b64_tr_b16 %s, v%d offset:%d" % (vr(VFR[i % 8] + 2 * jj, 2), V_WA + tt,
                                                              kb * 4096 + jj * 2048), ("v", i))

        for i in range(VPF):
            vread(i)
        slots = side_ops(j)
        if c == 0:
            for kb in range(8):
                fill = []
                if kb + PRE < 8:
                    fill = exp_ops(kb + PRE, 0) + exp_ops(kb + PRE, 1)
                elif kb + PRE == 8 and not msum:
                    for u in range(2):
                        fill.append("v_add_f32 v%d, v%d, v%d" % (V_L + u, V_SUM + 2 * u, V_SUM + 2 * u + 1))
                        fill += xlane(V_L + u, "v_add_f32")
                        fill.append("v_rcp_f32 v%d, v%d" % (V_L + u, V_L + u))
                n = len(fill)
                for q in range(8):
                    for op in fill[n * q // 8:n * (q + 1) // 8]:
                        slots.setdefault(8 * kb + q, []).append(("v", op))
        for i in range(32):
            kb, tt = items[i]
            for u in range(2):
                m = 2 * i + u
                a.wait_ds(("v", i))
                acc = vr(buf + (2 * tt + u) * 4, 4)
                e("v_mfma_f32_16x16x32_bf16 %s, %s, %s, %s" % (acc, vr(VFR[i % 8], 4), vr(sblk(kb, u), 4),
                                                              "0" if kb == 0 else acc))
                if u == 1 and i + VPF < 32:
                    vread(i + VPF)
                if msum and c == 0 and tt == 1 + u and u == 1 - (tt & 1) + (tt & 1) * 0 - 0 and False:
                    pass
                if msum and c == 0 and tt in (1, 3) and u == 1:
                    uu = tt >> 1
                    la = vr(LACC[uu], 4)
                    e("v_mfma_f32_16x16x32_bf16 %s, %s, %s, %s" % (la, vr(V_ONE, 4), vr(sblk(kb, uu), 4),
                                                                  "0" if kb == 0 else la))
                for op in slots.pop(m, []):
                    emit(op)
        assert not slots
        if msum and c == 0:
            for u in range(2):
                e("v_rcp_f32 v%d, v%d" % (V_L + u, LACC[u]))
    stamp(VS2, 1)
    if stamps:
        e("s_add_u32 s%d, s%d, 16" % (S_IT16, S_IT16))
    e("s_mov_b32 s%d, s%d" % (S_PREV, S_HEAD))
    e("s_mov_b32 s%d, s%d" % (S_HEAD, S_NEXT))
    e("s_add_u32 s%d, s%d, 1" % (S_IT, S_IT))
    e("s_cmp_lt_u32 s%d, 4" % S_IT)
    e("s_cbranch_scc1 L_head")
    body_vm = list(vm)
    e("s_barrier")
    ops, rd, st = epi_ops(V_OA, 2, S_PREV)
    for op in ops + rd + st:
        emit(op)
    vm[:] = body_vm
    a.skip = ()
    e("s_waitcnt vmcnt(0)")
    if stamps:
        e("s_memrealtime s[52:53]")
        e("s_memtime s[54:55]")
        e("s_waitcnt lgkmcnt(0)")
        for i, sr in enumerate((48, 50, 52, 54)):
            e("v_writelane_b32 v%d, s%d, %d" % (VS2, sr, 12 + i))
        e("s_mov_b32 s56, s62")
        e("s_and_b32 s57, s63, 0xffff")
        e("s_mov_b32 s58, 0x1000000")
        e("s_mov_b32 s59, 0x20000")
        e("s_lshl_b32 s60, s2, 3")
        e("s_add_u32 s60, s60, s%d" % S_WAVE)
        e("s_lshl_b32 s60, s60, 10")
        e("v_lshrrev_b32 v28, 2, v%d" % V_LIN)
        e("buffer_store_dword v%d, v28, s[56:59], s60 offen" % VS0)
        e("buffer_store_dword v%d, v28, s[56:59], s60 offen offset:256" % VS1)
        e("buffer_store_dword v%d, v28, s[56:59], s60 offen offset:512" % VS2)
        e("s_waitcnt vmcnt(0)")
    a.label("L_end")
    e("s_endpgm")
    if prev_body is None:
        return gen(ldf.strip(), stf.strip(), opts, prev_body=list(vm))
    assert prev_body == vm
    return HEADER % (NWG, LDS_BYTES, NAME, NAME, NAME) + a.text() + FOOTER % (NAME, 256, 80, 256)


if __name__ == "__main__":
    out = sys.argv[1] if len(sys.argv) > 1 else "cdna_kernels/%s.s" % NAME
    ld = sys.argv[2] if len(sys.argv) > 2 else "nt"
    st = sys.argv[3] if len(sys.argv) > 3 else "sc1"
    opts = sys.argv[4].split(",") if len(sys.argv) > 4 else ()
    open(out, "w").write(gen(ld, st, opts))
    print("wrote", out)
```

```python
import math
import struct
import sys

from asmlib import Asm

NAME = "standalone__mha_softmax__near_ridge"
HEAD_BYTES = 256 * 192 * 2
CH = 32768
TOTAL = 1024 * HEAD_BYTES
NSLOT = 5
NWG = 256
LDS_BYTES = 163840

HEADER = """; MHA softmax forward, B*H=1024 heads, Sq=Sk=256, D=192, bf16.
; @launch grid=(%d,1,1) block=(512,1,1) lds=%d
.amdgcn_target "amdgcn-amd-amdhsa--gfx950"
.text
.globl %s_kernel
.p2align 8
.type %s_kernel,@function
%s_kernel:
"""

FOOTER = """.section .rodata,"a"
.p2align 6
.amdhsa_kernel %s_kernel
  .amdhsa_next_free_vgpr %d
  .amdhsa_next_free_sgpr %d
  .amdhsa_accum_offset %d
  .amdhsa_group_segment_fixed_size 0
  .amdhsa_kernarg_size 48
  .amdhsa_user_sgpr_count 2
  .amdhsa_user_sgpr_kernarg_segment_ptr 1
  .amdhsa_system_sgpr_workgroup_id_x 1
.end_amdhsa_kernel
"""


def f32bits(x):
    return struct.unpack("<I", struct.pack("<f", x))[0]


def vr(base, n):
    return "v[%d:%d]" % (base, base + n - 1)


ORDER = [(0, 0), (1, 0), (0, 1), (1, 1), (0, 2), (1, 2), (2, 0), (2, 1), (2, 2)]
ISSUE = {0: [4], 1: [5, 6], 2: [7, 8], 3: [9, 10], 4: [11], 5: [12]}
NEED = {0: [0, 1], 1: [2, 3], 2: [4, 5], 3: [6], 4: [7], 5: [8]}


def optval(opts, key, default):
    for o in opts:
        if o.startswith(key + "="):
            return o[len(key) + 1:]
    return default


def gen(ldf="nt", stf="sc1", opts=(), prev_body=None):
    a = Asm()
    e = a.e
    stamps = "stamp" in opts
    msum = "msum" in opts
    SQ, SK, SV, SO = 12, 16, 20, 24
    S_HEAD, S_NEXT, S_PREV, S_WB, S_IT, S_C, S_WAVE, S_T = 32, 33, 34, 35, 36, 37, 38, 39
    S_WR, S_WEND, S_RD, S_SZ, S_RQ, S_RK = 40, 41, 42, 43, 28, 29
    srd = lambda b: "s[%d:%d]" % (b, b + 3)
    V_DMA = 1
    V_KQ = 5
    V_VB = 7
    V_WA = 11
    V_EWB = 15
    V_LIN = 16
    V_M = 17
    V_L = 19
    V_SUM = 21
    V_EW = 21
    V_T0 = 25
    V_ER = 25
    V_ONE = 26
    V_ST = 30
    V_OA, V_OB = 32, 64
    V_Q = 96
    KFR = [64 + 4 * i for i in range(8)] + [112 + 4 * i for i in range(4)]
    VFR = [96 + 4 * i for i in range(8)]
    V_S = 128
    T = 128

    ldf = (" " + ldf) if ldf else ""
    stf = (" " + stf) if stf else ""
    vm = []

    e("s_cmp_ge_u32 s2, %d" % NWG)
    e("s_cbranch_scc1 L_end")
    e("s_load_dwordx8 s[4:11], s[0:1], 0")
    t = lambda i: "v%d" % (T + i)
    e("v_lshrrev_b32 %s, 6, v0" % t(0))
    e("v_and_b32 v0, 63, v0")
    e("v_readfirstlane_b32 s%d, %s" % (S_WAVE, t(0)))
    e("v_lshrrev_b32 %s, 3, v0" % t(1))
    e("v_lshl_add_u32 %s, %s, 5, %s" % (t(2), t(0), t(1)))
    e("v_mul_u32_u24 %s, 0x180, %s" % (t(2), t(2)))
    e("v_and_b32 %s, 7, v0" % t(3))
    e("v_xor_b32 %s, %s, %s" % (t(3), t(3), t(1)))
    e("v_lshl_add_u32 v%d, %s, 4, %s" % (V_DMA, t(3), t(2)))
    for k in range(1, 4):
        e("v_add_u32 v%d, 0x%x, v%d" % (V_DMA + k, 2048 * k, V_DMA))
    e("s_lshl_b32 s%d, s%d, 12" % (S_WB, S_WAVE))
    e("s_mul_i32 s%d, s2, %d" % (S_HEAD, HEAD_BYTES))
    e("s_mov_b32 s%d, %d" % (S_SZ, TOTAL))
    e("s_mov_b32 s%d, s%d" % (S_WR, S_WB))
    e("s_add_u32 s%d, s%d, %d" % (S_WEND, S_WB, NSLOT * CH))
    e("s_waitcnt lgkmcnt(0)")
    for (b, p) in ((SQ, 4), (SK, 6), (SV, 8), (SO, 10)):
        e("s_mov_b32 s%d, s%d" % (b, p))
        e("s_and_b32 s%d, s%d, 0xffff" % (b + 1, p + 1))
        e("s_mov_b32 s%d, %d" % (b + 2, TOTAL if (b != SO or "nopeel" not in opts) else 0))
        e("s_mov_b32 s%d, 0x20000" % (b + 3))

    dma_state = {}

    def dma_setup(n):
        h = S_NEXT if n >= 9 else S_HEAD
        tens, c = ORDER[n % 9]
        if c:
            e("s_add_u32 s%d, s%d, %d" % (S_T, h, 128 * c))
            so = S_T
        else:
            so = h
        e("s_mov_b32 m0, s%d" % S_WR)
        e("s_add_u32 s%d, s%d, %d" % (S_WR, S_WR, CH))
        e("s_cmp_eq_u32 s%d, s%d" % (S_WR, S_WEND))
        e("s_cselect_b32 s%d, s%d, s%d" % (S_WR, S_WB, S_WR))
        dma_state["cur"] = (n, (SQ, SK, SV)[tens], so)

    WIN = int(optval(opts, "win", "0"))
    win_on = [False]

    def window():
        if WIN and win_on[0]:
            e("s_waitcnt vmcnt(%d)" % (WIN - 1))

    def dma_issue(k):
        n, srdb, so = dma_state["cur"]
        window()
        e("buffer_load_dwordx4 v%d, %s, s%d offen offset:%d%s lds" % (V_DMA + k, srd(srdb), so, 1024 * k, ldf))
        vm.append(("T", n))

    peel = "nopeel" not in opts
    NPRO = int(optval(opts, "npro", "3")) if peel else 4
    for n in range(NPRO):
        dma_setup(n)
        for k in range(4):
            dma_issue(k)
    pro_vm = [("T", n + 9) for (_, n) in vm]
    vm.clear()
    win_on[0] = True

    e("v_and_b32 %s, 15, v0" % t(1))
    e("v_lshrrev_b32 %s, 4, v0" % t(2))
    e("v_and_b32 %s, 7, v0" % t(3))
    e("v_xor_b32 %s, %s, %s" % (t(4), t(2), t(3)))
    e("v_lshlrev_b32 %s, 7, %s" % (t(5), t(1)))
    e("v_lshl_add_u32 v%d, %s, 4, %s" % (V_KQ, t(4), t(5)))
    e("v_xor_b32 v%d, 64, v%d" % (V_KQ + 1, V_KQ))
    e("v_lshrrev_b32 %s, 1, %s" % (t(4), t(2)))
    e("v_xor_b32 %s, %s, %s" % (t(4), t(4), t(3)))
    e("v_lshl_add_u32 %s, %s, 4, %s" % (t(4), t(4), t(5)))
    e("v_and_b32 %s, 1, %s" % (t(6), t(2)))
    e("v_lshl_add_u32 v%d, %s, 3, %s" % (V_EWB, t(6), t(4)))
    e("v_lshlrev_b32 v%d, 4, v0" % V_LIN)
    e("v_lshrrev_b32 %s, 2, v0" % t(1))
    e("v_and_b32 %s, 7, %s" % (t(3), t(1)))
    e("v_bfe_u32 %s, v0, 1, 1" % t(4))
    e("v_xor_b32 %s, %s, %s" % (t(4), t(4), t(3)))
    e("v_lshlrev_b32 %s, 7, %s" % (t(5), t(1)))
    e("v_lshl_add_u32 %s, %s, 4, %s" % (t(4), t(4), t(5)))
    e("v_and_b32 %s, 1, v0" % t(6))
    e("v_lshl_add_u32 v%d, %s, 3, %s" % (V_VB, t(6), t(4)))
    for tt in range(1, 4):
        e("v_xor_b32 v%d, %d, v%d" % (V_VB + tt, 32 * tt, V_VB))
    if msum:
        for i in range(4):
            e("v_mov_b32 v%d, 0x3f803f80" % (V_ONE + i))
    e("s_mov_b32 s%d, 0x%08x" % (S_C, f32bits(192 ** -0.5 * math.log2(math.e))))
    e("s_mov_b32 s%d, 0" % S_IT)
    e("s_mov_b32 s%d, 0" % S_RD)
    e("s_mov_b32 s%d, 0" % S_PREV)
    if "prio" in opts:
        e("s_cmp_ge_u32 s%d, 4" % S_WAVE)
        e("s_cbranch_scc0 L_prio")
        e("s_setprio 1")
        a.label("L_prio")

    S_ST, S_LN, S_IT16, S_M0 = 44, 46, 47, 61

    def stamp(vreg, idx, rt=False):
        if not stamps:
            return
        a.wait_ds_all()
        e("%s s[%d:%d]" % ("s_memrealtime" if rt else "s_memtime", S_ST, S_ST + 1))
        e("s_add_u32 s%d, s%d, %d" % (S_LN, S_IT16, idx))
        e("s_mov_b32 s%d, m0" % S_M0)
        e("s_waitcnt lgkmcnt(0)")
        e("s_mov_b32 m0, s%d" % S_LN)
        e("v_writelane_b32 v%d, s%d, m0" % (vreg, S_ST))
        e("s_mov_b32 m0, s%d" % S_M0)
    VS0, VS1, VS2 = V_ST, V_ST + 1, 0
    if stamps:
        e("s_load_dwordx2 s[62:63], s[0:1], 40")
        e("s_memrealtime s[48:49]")
        e("s_memtime s[50:51]")
        e("s_mov_b32 s%d, 0" % S_IT16)
        e("s_waitcnt lgkmcnt(0)")

    sk = []
    if "nomfma" in opts:
        sk += ["v_mfma"]
    if "noexp" in opts:
        sk += ["v_exp", "v_fma", "v_add_f32", "v_cvt", "v_max", "v_mul_f32", "v_rcp", "v_permlane"]
    a.skip = tuple(sk)

    def count_after(lst, tag):
        idx = max(i for i, x in enumerate(lst) if x == tag)
        return len(lst) - 1 - idx

    def rd_inc():
        e("s_add_u32 s%d, s%d, %d" % (S_RD, S_RD, CH))
        e("s_cmp_eq_u32 s%d, %d" % (S_RD, NSLOT * CH))
        e("s_cselect_b32 s%d, 0, s%d" % (S_RD, S_RD))

    def step_begin(j, first=False):
        stamp(VS0, j)
        stamp(VS1, j, True)
        n = NEED[j][-1]
        if first:
            e("s_waitcnt vmcnt(%d)" % count_after(pro_vm, ("T", n + 9)))
        elif peel and ("T", n) not in vm:
            e("s_waitcnt vmcnt(%d)" % count_after((prev_body or [("T", n + 9)]) + vm, ("T", n + 9)))
        elif ("T", n) in vm:
            e("s_waitcnt vmcnt(%d)" % count_after(vm, ("T", n)))
        else:
            n_first = count_after(pro_vm + vm, ("T", n + 9))
            n_steady = count_after((prev_body or pro_vm) + vm, ("T", n + 9))
            assert n_steady <= 63
            e("s_waitcnt vmcnt(%d)" % n_steady)
            if n_first != n_steady:
                assert n_first < n_steady
                e("s_cmp_lg_u32 s%d, 0" % S_IT)
                e("s_cbranch_scc1 L_w%d" % j)
                e("s_waitcnt vmcnt(%d)" % n_first)
                a.label("L_w%d" % j)
        e("s_barrier")
        stamp(VS0, 8 + j)

    def sblk(kb, u):
        return V_S + (2 * kb + u) * 8

    def stile(kt, u):
        return sblk(kt >> 1, u) + 4 * (kt & 1)

    def epi_ops(buf, c, so):
        ops = [("v", "v_add_u32 v%d, s%d, v%d" % (V_EW, S_WR, V_EWB)),
               ("v", "v_add_u32 v%d, s%d, v%d" % (V_ER, S_WR, V_LIN))]
        for tt in range(1, 4):
            ops.append(("v", "v_xor_b32 v%d, %d, v%d" % (V_EW + tt, 32 * tt, V_EW)))
        for tt in range(4):
            for u in range(2):
                b = buf + (2 * tt + u) * 4
                for i in range(4):
                    ops.append(("v", "v_mul_f32 v%d, v%d, v%d" % (b + i, b + i, V_L + u)))
                for i in range(2):
                    ops.append(("v", "v_cvt_pk_bf16_f32 v%d, v%d, v%d" % (b + i, b + 2 * i, b + 2 * i + 1)))
                ops.append(("w", "ds_write_b64 v%d, %s offset:%d" % (V_EW + tt, vr(b, 2), 2048 * u)))
        rd = [("r", "ds_read_b128 %s, v%d offset:%d" % (vr(buf + 16 + 4 * k, 4), V_ER, 1024 * k), ("e", k)) for k in range(4)]
        st = [("s", "buffer_store_dwordx4 %s, v%d, %s, s%d offen offset:%d%s" % (
            vr(buf + 16 + 4 * k, 4), V_DMA + k, srd(SO), so, 1024 * k + 128 * c, stf), ("e", k)) for k in range(4)]
        return ops, rd, st

    def emit(op):
        if op[0] == "v":
            e(op[1])
        elif op[0] == "w":
            a.ds(op[1], "ew")
        elif op[0] == "r":
            a.ds(op[1], op[2])
        elif op[0] == "s":
            a.wait_ds(op[2])
            window()
            e(op[1])
            vm.append(("S",))
        elif op[0] == "setup":
            dma_setup(op[1])
        elif op[0] == "dma":
            dma_issue(op[1])
        elif op[0] == "salu":
            e(op[1])

    def place(slots, pos, ops):
        for p, op in zip(pos, ops):
            slots.setdefault(p, []).append(op)

    EP_V = int(optval(opts, "epv", "5"))
    NS = [int(x) for x in optval(opts, "n", "4:8:8:8:4:4").split(":")]
    assert sum(NS) == 36
    VEND = int(optval(opts, "vend", "60"))
    VBEG = int(optval(opts, "vbeg", "1"))
    seq = [(n, k) for n in range(4, 13) for k in range(4)]
    EARLIEST = {4: 0, 5: 0, 6: 1, 7: 1, 8: 2, 9: 2, 10: 3, 11: 4, 12: 5}
    NEEDED = {4: 2, 5: 2, 6: 3, 7: 4, 8: 5, 9: 6, 10: 6, 11: 7, 12: 7}
    STEP_DMA = {}
    pos0 = 0
    for j in range(6):
        STEP_DMA[j] = seq[pos0:pos0 + NS[j]]
        pos0 += NS[j]
        for (n, k) in STEP_DMA[j]:
            assert EARLIEST[n] <= j < NEEDED[n], (n, j)

    def spread(n, lo, hi):
        if n == 1:
            return [lo]
        return [lo + (hi - lo) * i // (n - 1) for i in range(n)]

    def side_ops(j, first=False):
        slots = {}
        dm = list(STEP_DMA[j])
        if first:
            dm = [(n, k) for n in range(NPRO, 4) for k in range(4)] + dm
        vops = []
        lo = max(VBEG, 4) if any(n in (5, 7, 9) for (n, k) in dm[:1]) else VBEG
        if j in (0, 4, 5) and not first:
            buf, c, so = {0: (V_OA, 2, S_PREV), 4: (V_OA, 0, S_HEAD), 5: (V_OB, 1, S_HEAD)}[j]
            ops, rd, st = epi_ops(buf, c, so)
            place(slots, [i // EP_V for i in range(len(ops))], ops)
            last = (len(ops) - 1) // EP_V
            place(slots, [last + 1] * 4, rd)
            pre = [x for x in dm if x[0] == dm[0][0] and dm[0][1] != 0]
            dm = dm[len(pre):]
            place(slots, spread(len(pre), VBEG, last) if pre else [], [("dma", k) for (n, k) in pre])
            vops = [[x] for x in st]
            if j == 0 and not peel:
                vops[-1].append(("salu", "s_mov_b32 s%d, s%d" % (SO + 2, S_SZ)))
            lo = last + 4
        for (n, k) in dm:
            vops.append(([("setup", n)] if k == 0 else []) + [("dma", k)])
        for p_, ol in zip(spread(len(vops), lo, VEND), vops):
            place(slots, [p_] * len(ol), ol)
        return slots

    def exp_ops(kb, u):
        ops = []
        b = sblk(kb, u)
        for i in range(8):
            ops.append("v_fma_f32 v%d, v%d, s%d, -v%d" % (b + i, b + i, S_C, V_M + u))
        for i in range(8):
            ops.append("v_exp_f32 v%d, v%d" % (b + i, b + i))
        if not msum:
            for i in range(8):
                sr = V_SUM + 2 * u + (i & 1)
                if kb == 0 and i < 4:
                    if i < 2:
                        ops.append("v_add_f32 v%d, v%d, v%d" % (sr, b + i, b + i + 2))
                else:
                    ops.append("v_add_f32 v%d, v%d, v%d" % (sr, sr, b + i))
        for i in range(4):
            ops.append("v_cvt_pk_bf16_f32 v%d, v%d, v%d" % (b + i, b + 2 * i, b + 2 * i + 1))
        return ops

    def xlane(reg, op):
        return ["v_mov_b32 v%d, v%d" % (V_T0, reg),
                "v_permlane32_swap_b32 v%d, v%d" % (reg, V_T0),
                "%s v%d, v%d, v%d" % (op, reg, reg, V_T0),
                "v_mov_b32 v%d, v%d" % (V_T0, reg),
                "v_permlane16_swap_b32 v%d, v%d" % (reg, V_T0),
                "%s v%d, v%d, v%d" % (op, reg, reg, V_T0)]

    PF = int(optval(opts, "kpf", "8"))

    def kstep(c, first=False):
        j = c
        e("s_add_u32 s%d, s%d, s%d" % (S_RQ, S_RD, S_WB))
        rd_inc()
        for kk in range(2):
            e("v_add_u32 v%d, s%d, v%d" % (V_WA + 2 + kk, S_RQ, V_KQ + kk))
            e("v_add_u32 v%d, s%d, v%d" % (V_WA + kk, S_RD, V_KQ + kk))
        rd_inc()
        step_begin(j, first)
        items = [(kt, kk) for kt in range(16) for kk in range(2)]

        def kread(i):
            kt, kk = items[i]
            a.ds("ds_read_b128 %s, v%d offset:%d" % (vr(KFR[i % 12], 4), V_WA + kk, kt * 2048), ("k", i))

        def qread(u, kk):
            a.ds("ds_read_b128 %s, v%d offset:%d" % (vr(V_Q + 8 * kk + 4 * u, 4), V_WA + 2 + kk, u * 2048), ("q", u, kk))

        qread(0, 0)
        kread(0)
        qread(1, 0)
        qread(0, 1)
        kread(1)
        qread(1, 1)
        for i in range(2, PF):
            kread(i)
        slots = side_ops(j, first)
        maxq = []
        for i in range(32):
            kt, kk = items[i]
            for u in range(2):
                m = 2 * i + u
                a.wait_ds(("k", i))
                a.wait_ds(("q", u, kk))
                acc = vr(stile(kt, u), 4)
                e("v_mfma_f32_16x16x32_bf16 %s, %s, %s, %s" % (acc, vr(KFR[i % 12], 4), vr(V_Q + 8 * kk + 4 * u, 4),
                                                              "0" if (c == 0 and kk == 0) else acc))
                if u == 1 and i + PF < 32:
                    kread(i + PF)
                if c == 2:
                    if kk == 1:
                        b = stile(kt, u)
                        if kt == 0:
                            maxq.append((m + 4, "v_max_f32 v%d, v%d, v%d" % (V_M + u, b, b + 1)))
                        else:
                            maxq.append((m + 4, "v_max3_f32 v%d, v%d, v%d, v%d" % (V_M + u, V_M + u, b, b + 1)))
                        maxq.append((m + 4, "v_max3_f32 v%d, v%d, v%d, v%d" % (V_M + u, V_M + u, b + 2, b + 3)))
                    if maxq and maxq[0][0] <= m:
                        e(maxq.pop(0)[1])
                for op in slots.pop(m, []):
                    emit(op)
        assert not slots
        for _, op in maxq:
            e(op)

    if peel:
        e("s_add_u32 s%d, s%d, %d" % (S_NEXT, S_HEAD, NWG * HEAD_BYTES))
        kstep(0, first=True)
        e("s_waitcnt vmcnt(%d)" % count_after(pro_vm + [("T", n + 9) for (_, n) in vm], ("T", 12)))
        vm.clear()
        e("s_branch L_step1")
    a.label("L_head")
    e("s_add_u32 s%d, s%d, %d" % (S_NEXT, S_HEAD, NWG * HEAD_BYTES))
    kstep(0)
    a.label("L_step1")
    kstep(1)
    e("s_cmp_lt_u32 s%d, 3" % S_IT)
    e("s_cselect_b32 s%d, s%d, 0" % (SQ + 2, S_SZ))
    e("s_cselect_b32 s%d, s%d, 0" % (SK + 2, S_SZ))
    kstep(2)
    stamp(VS2, 0)
    for u in range(2):
        for op in xlane(V_M + u, "v_max_f32"):
            e(op)
        e("v_mul_f32 v%d, s%d, v%d" % (V_M + u, S_C, V_M + u))
    PRE = int(optval(opts, "pre", "1"))
    for kb in range(PRE):
        for u in range(2):
            for op in exp_ops(kb, u):
                e(op)

    VPF = int(optval(opts, "vpf", "6"))
    LACC = [sblk(0, 0) + 4, sblk(0, 1) + 4]
    for c in range(3):
        j = 3 + c
        buf = V_OB if c == 1 else V_OA
        for tt in range(4):
            e("v_add_u32 v%d, s%d, v%d" % (V_WA + tt, S_RD, V_VB + tt))
        rd_inc()
        step_begin(j)
        items = [(kb, tt) for kb in range(8) for tt in range(4)]

        def vread(i):
            kb, tt = items[i]
            for jj in range(2):
                a.ds("ds_read_b64_tr_b16 %s, v%d offset:%d" % (vr(VFR[i % 8] + 2 * jj, 2), V_WA + tt,
                                                              kb * 4096 + jj * 2048), ("v", i))

        for i in range(VPF):
            vread(i)
        slots = side_ops(j)
        if c == 0:
            for kb in range(8):
                fill = []
                if kb + PRE < 8:
                    fill = exp_ops(kb + PRE, 0) + exp_ops(kb + PRE, 1)
                elif kb + PRE == 8 and not msum:
                    for u in range(2):
                        fill.append("v_add_f32 v%d, v%d, v%d" % (V_L + u, V_SUM + 2 * u, V_SUM + 2 * u + 1))
                        fill += xlane(V_L + u, "v_add_f32")
                        fill.append("v_rcp_f32 v%d, v%d" % (V_L + u, V_L + u))
                n = len(fill)
                for q in range(8):
                    for op in fill[n * q // 8:n * (q + 1) // 8]:
                        slots.setdefault(8 * kb + q, []).append(("v", op))
        for i in range(32):
            kb, tt = items[i]
            for u in range(2):
                m = 2 * i + u
                a.wait_ds(("v", i))
                acc = vr(buf + (2 * tt + u) * 4, 4)
                e("v_mfma_f32_16x16x32_bf16 %s, %s, %s, %s" % (acc, vr(VFR[i % 8], 4), vr(sblk(kb, u), 4),
                                                              "0" if kb == 0 else acc))
                if u == 1 and i + VPF < 32:
                    vread(i + VPF)
                if msum and c == 0 and tt in (1, 3) and u == 1:
                    uu = tt >> 1
                    la = vr(LACC[uu], 4)
                    e("v_mfma_f32_16x16x32_bf16 %s, %s, %s, %s" % (la, vr(V_ONE, 4), vr(sblk(kb, uu), 4),
                                                                  "0" if kb == 0 else la))
                for op in slots.pop(m, []):
                    emit(op)
        assert not slots
        if msum and c == 0:
            for u in range(2):
                e("v_rcp_f32 v%d, v%d" % (V_L + u, LACC[u]))
    stamp(VS2, 1)
    if stamps:
        e("s_add_u32 s%d, s%d, 16" % (S_IT16, S_IT16))
    e("s_mov_b32 s%d, s%d" % (S_PREV, S_HEAD))
    e("s_mov_b32 s%d, s%d" % (S_HEAD, S_NEXT))
    e("s_add_u32 s%d, s%d, 1" % (S_IT, S_IT))
    e("s_cmp_lt_u32 s%d, 4" % S_IT)
    e("s_cbranch_scc1 L_head")
    body_vm = list(vm)
    win_on[0] = False
    if "oldtail" in opts:
        e("s_barrier")
    else:
        assert (4 * 9 + 4) % NSLOT == 0
        e("s_waitcnt vmcnt(%d)" % count_after(vm, ("T", 9)))
        e("s_add_u32 s%d, s%d, %d" % (S_WR, S_WB, CH))
    ops, rd, st = epi_ops(V_OA, 2, S_PREV)
    for op in ops + rd + st:
        emit(op)
    vm[:] = body_vm
    a.skip = ()
    if stamps or "oldtail" in opts:
        e("s_waitcnt vmcnt(0)")
    if stamps:
        e("s_memrealtime s[52:53]")
        e("s_memtime s[54:55]")
        e("s_waitcnt lgkmcnt(0)")
        for i, sr in enumerate((48, 50, 52, 54)):
            e("v_writelane_b32 v%d, s%d, %d" % (VS2, sr, 12 + i))
        e("s_mov_b32 s56, s62")
        e("s_and_b32 s57, s63, 0xffff")
        e("s_mov_b32 s58, 0x1000000")
        e("s_mov_b32 s59, 0x20000")
        e("s_lshl_b32 s60, s2, 3")
        e("s_add_u32 s60, s60, s%d" % S_WAVE)
        e("s_lshl_b32 s60, s60, 10")
        e("v_lshrrev_b32 v28, 2, v%d" % V_LIN)
        e("buffer_store_dword v%d, v28, s[56:59], s60 offen" % VS0)
        e("buffer_store_dword v%d, v28, s[56:59], s60 offen offset:256" % VS1)
        e("buffer_store_dword v%d, v28, s[56:59], s60 offen offset:512" % VS2)
        e("s_waitcnt vmcnt(0)")
    a.label("L_end")
    e("s_endpgm")
    if prev_body is None:
        return gen(ldf.strip(), stf.strip(), opts, prev_body=list(vm))
    assert prev_body == vm
    return HEADER % (NWG, LDS_BYTES, NAME, NAME, NAME) + a.text() + FOOTER % (NAME, 256, 80, 256)


if __name__ == "__main__":
    out = sys.argv[1] if len(sys.argv) > 1 else "cdna_kernels/%s.s" % NAME
    ld = sys.argv[2] if len(sys.argv) > 2 else "nt"
    st = sys.argv[3] if len(sys.argv) > 3 else "sc1"
    opts = sys.argv[4].split(",") if len(sys.argv) > 4 else ()
    open(out, "w").write(gen(ld, st, opts))
    print("wrote", out)
```

```python
import math
import re
import struct
import sys

from asmlib import Asm

NAME = "standalone__mha_softmax__near_ridge"
HEAD_BYTES = 256 * 192 * 2
CH = 32768
TOTAL = 1024 * HEAD_BYTES
NSLOT = 5
NWG = 256
LDS_BYTES = 163840

HEADER = """; MHA softmax forward, B*H=1024 heads, Sq=Sk=256, D=192, bf16.
; @launch grid=(%d,1,1) block=(512,1,1) lds=%d
.amdgcn_target "amdgcn-amd-amdhsa--gfx950"
.text
.globl %s_kernel
.p2align 8
.type %s_kernel,@function
%s_kernel:
"""

FOOTER = """.section .rodata,"a"
.p2align 6
.amdhsa_kernel %s_kernel
  .amdhsa_next_free_vgpr %d
  .amdhsa_next_free_sgpr %d
  .amdhsa_accum_offset %d
  .amdhsa_group_segment_fixed_size 0
  .amdhsa_kernarg_size 48
  .amdhsa_user_sgpr_count 2
  .amdhsa_user_sgpr_kernarg_segment_ptr 1
  .amdhsa_system_sgpr_workgroup_id_x 1
.end_amdhsa_kernel
"""


def f32bits(x):
    return struct.unpack("<I", struct.pack("<f", x))[0]


def vr(base, n):
    return "v[%d:%d]" % (base, base + n - 1)


ORDER = [(0, 0), (1, 0), (0, 1), (1, 1), (0, 2), (1, 2), (2, 0), (2, 1), (2, 2)]
ISSUE = {0: [4], 1: [5, 6], 2: [7, 8], 3: [9, 10], 4: [11], 5: [12]}
NEED = {0: [0, 1], 1: [2, 3], 2: [4, 5], 3: [6], 4: [7], 5: [8]}


def optval(opts, key, default):
    for o in opts:
        if o.startswith(key + "="):
            return o[len(key) + 1:]
    return default


def gen(ldf="nt", stf="sc1", opts=(), bodies=None):
    a = Asm()
    e = a.e
    stamps = "stamp" in opts
    msum = "msum" in opts
    SQ, SK, SV, SO = 12, 16, 20, 24
    S_HEAD, S_NEXT, S_PREV, S_WB, S_IT, S_C, S_WAVE, S_T = 32, 33, 34, 35, 36, 37, 38, 39
    S_WR, S_WEND, S_RD, S_SZ, S_RQ, S_RK = 40, 41, 42, 43, 28, 29
    srd = lambda b: "s[%d:%d]" % (b, b + 3)
    V_DMA = 1
    V_KQ = 5
    V_VB = 7
    V_WA = 11
    V_EWB = 15
    V_LIN = 16
    V_M = 17
    V_L = 19
    V_SUM = 21
    V_EW = 21
    V_T0 = 25
    V_ER = 25
    V_ONE = 26
    V_ST = 30
    V_OA, V_OB = 32, 64
    V_Q = 96
    KFR = [64 + 4 * i for i in range(8)] + [112 + 4 * i for i in range(4)]
    VFR = [96 + 4 * i for i in range(8)]
    V_S = 128
    T = 128

    ldf = (" " + ldf) if ldf else ""
    stf = (" " + stf) if stf else ""
    vm = []

    e("s_cmp_ge_u32 s2, %d" % NWG)
    e("s_cbranch_scc1 L_end")
    e("s_load_dwordx8 s[4:11], s[0:1], 0")
    t = lambda i: "v%d" % (T + i)
    e("v_lshrrev_b32 %s, 6, v0" % t(0))
    e("v_and_b32 v0, 63, v0")
    e("v_readfirstlane_b32 s%d, %s" % (S_WAVE, t(0)))
    e("v_lshrrev_b32 %s, 3, v0" % t(1))
    e("v_lshl_add_u32 %s, %s, 5, %s" % (t(2), t(0), t(1)))
    e("v_mul_u32_u24 %s, 0x180, %s" % (t(2), t(2)))
    e("v_and_b32 %s, 7, v0" % t(3))
    e("v_xor_b32 %s, %s, %s" % (t(3), t(3), t(1)))
    e("v_lshl_add_u32 v%d, %s, 4, %s" % (V_DMA, t(3), t(2)))
    for k in range(1, 4):
        e("v_add_u32 v%d, 0x%x, v%d" % (V_DMA + k, 2048 * k, V_DMA))
    e("s_lshl_b32 s%d, s%d, 12" % (S_WB, S_WAVE))
    e("s_mul_i32 s%d, s2, %d" % (S_HEAD, HEAD_BYTES))
    e("s_mov_b32 s%d, %d" % (S_SZ, TOTAL))
    e("s_mov_b32 s%d, s%d" % (S_WR, S_WB))
    e("s_add_u32 s%d, s%d, %d" % (S_WEND, S_WB, NSLOT * CH))
    e("s_waitcnt lgkmcnt(0)")
    for (b, p) in ((SQ, 4), (SK, 6), (SV, 8), (SO, 10)):
        e("s_mov_b32 s%d, s%d" % (b, p))
        e("s_and_b32 s%d, s%d, 0xffff" % (b + 1, p + 1))
        e("s_mov_b32 s%d, %d" % (b + 2, TOTAL))
        e("s_mov_b32 s%d, 0x20000" % (b + 3))

    dma_state = {}

    def dma_setup(n):
        h = S_NEXT if n >= 9 else S_HEAD
        tens, c = ORDER[n % 9]
        if c:
            e("s_add_u32 s%d, s%d, %d" % (S_T, h, 128 * c))
            so = S_T
        else:
            so = h
        e("s_mov_b32 m0, s%d" % S_WR)
        e("s_add_u32 s%d, s%d, %d" % (S_WR, S_WR, CH))
        e("s_cmp_eq_u32 s%d, s%d" % (S_WR, S_WEND))
        e("s_cselect_b32 s%d, s%d, s%d" % (S_WR, S_WB, S_WR))
        dma_state["cur"] = (n, (SQ, SK, SV)[tens], so)

    WIN = int(optval(opts, "win", "0"))
    win_on = [False]

    def window():
        if WIN and win_on[0]:
            e("s_waitcnt vmcnt(%d)" % (WIN - 1))

    def dma_issue(k):
        n, srdb, so = dma_state["cur"]
        window()
        e("buffer_load_dwordx4 v%d, %s, s%d offen offset:%d%s lds" % (V_DMA + k, srd(srdb), so, 1024 * k, ldf))
        vm.append(("T", n))

    NPRO = int(optval(opts, "npro", "3"))
    for n in range(NPRO):
        if n == 2 and "pbar" in opts:
            e("s_barrier")
        dma_setup(n)
        for k in range(4):
            dma_issue(k)
    win_on[0] = True

    e("v_and_b32 %s, 15, v0" % t(1))
    e("v_lshrrev_b32 %s, 4, v0" % t(2))
    e("v_and_b32 %s, 7, v0" % t(3))
    e("v_xor_b32 %s, %s, %s" % (t(4), t(2), t(3)))
    e("v_lshlrev_b32 %s, 7, %s" % (t(5), t(1)))
    e("v_lshl_add_u32 v%d, %s, 4, %s" % (V_KQ, t(4), t(5)))
    e("v_xor_b32 v%d, 64, v%d" % (V_KQ + 1, V_KQ))
    e("v_lshrrev_b32 %s, 1, %s" % (t(4), t(2)))
    e("v_xor_b32 %s, %s, %s" % (t(4), t(4), t(3)))
    e("v_lshl_add_u32 %s, %s, 4, %s" % (t(4), t(4), t(5)))
    e("v_and_b32 %s, 1, %s" % (t(6), t(2)))
    e("v_lshl_add_u32 v%d, %s, 3, %s" % (V_EWB, t(6), t(4)))
    e("v_lshlrev_b32 v%d, 4, v0" % V_LIN)
    e("v_lshrrev_b32 %s, 2, v0" % t(1))
    e("v_and_b32 %s, 7, %s" % (t(3), t(1)))
    e("v_bfe_u32 %s, v0, 1, 1" % t(4))
    e("v_xor_b32 %s, %s, %s" % (t(4), t(4), t(3)))
    e("v_lshlrev_b32 %s, 7, %s" % (t(5), t(1)))
    e("v_lshl_add_u32 %s, %s, 4, %s" % (t(4), t(4), t(5)))
    e("v_and_b32 %s, 1, v0" % t(6))
    e("v_lshl_add_u32 v%d, %s, 3, %s" % (V_VB, t(6), t(4)))
    for tt in range(1, 4):
        e("v_xor_b32 v%d, %d, v%d" % (V_VB + tt, 32 * tt, V_VB))
    if msum:
        for i in range(4):
            e("v_mov_b32 v%d, 0x3f803f80" % (V_ONE + i))
    e("s_mov_b32 s%d, 0x%08x" % (S_C, f32bits(192 ** -0.5 * math.log2(math.e))))
    e("s_mov_b32 s%d, 0" % S_IT)
    e("s_mov_b32 s%d, 0" % S_RD)
    e("s_mov_b32 s%d, 0" % S_PREV)
    if "prio" in opts:
        e("s_cmp_ge_u32 s%d, 4" % S_WAVE)
        e("s_cbranch_scc0 L_prio")
        e("s_setprio 1")
        a.label("L_prio")

    S_ST, S_LN, S_IT16, S_M0 = 44, 46, 47, 61

    def stamp(vreg, idx, rt=False):
        if not stamps:
            return
        a.wait_ds_all()
        e("%s s[%d:%d]" % ("s_memrealtime" if rt else "s_memtime", S_ST, S_ST + 1))
        e("s_add_u32 s%d, s%d, %d" % (S_LN, S_IT16, idx))
        e("s_mov_b32 s%d, m0" % S_M0)
        e("s_waitcnt lgkmcnt(0)")
        e("s_mov_b32 m0, s%d" % S_LN)
        e("v_writelane_b32 v%d, s%d, m0" % (vreg, S_ST))
        e("s_mov_b32 m0, s%d" % S_M0)
    VS0, VS1, VS2 = V_ST, V_ST + 1, 0
    if stamps:
        e("s_load_dwordx2 s[62:63], s[0:1], 40")
        e("s_memrealtime s[48:49]")
        e("s_memtime s[50:51]")
        e("s_mov_b32 s%d, 0" % S_IT16)
        e("s_waitcnt lgkmcnt(0)")

    sk = []
    if "nomfma" in opts:
        sk += ["v_mfma"]
    if "noexp" in opts:
        sk += ["v_exp", "v_fma", "v_add_f32", "v_cvt", "v_max", "v_mul_f32", "v_rcp", "v_permlane"]
    a.skip = tuple(sk)

    def count_after(lst, tag):
        idx = max(i for i, x in enumerate(lst) if x == tag)
        return len(lst) - 1 - idx

    def rd_inc():
        e("s_add_u32 s%d, s%d, %d" % (S_RD, S_RD, CH))
        e("s_cmp_eq_u32 s%d, %d" % (S_RD, NSLOT * CH))
        e("s_cselect_b32 s%d, 0, s%d" % (S_RD, S_RD))

    cur = {"kind": None}
    PRED = {"first": [], "loop": ["first", "loop"], "last": ["loop"]}

    def wait_for(n):
        if vm.count(("T", n)) == 4:
            return count_after(vm, ("T", n))
        assert ("T", n) not in vm
        if bodies is None:
            return 0
        return min(count_after(bodies[p] + vm, ("T", n + 9)) for p in PRED[cur["kind"]])

    def step_begin(j):
        stamp(VS0, j)
        stamp(VS1, j, True)
        w = min(wait_for(n) for n in NEED[j])
        assert w <= 63
        e("s_waitcnt vmcnt(%d)" % w)
        e("s_barrier")
        stamp(VS0, 8 + j)

    def sblk(kb, u):
        return V_S + (2 * kb + u) * 8

    def stile(kt, u):
        return sblk(kt >> 1, u) + 4 * (kt & 1)

    def epi_ops(buf, c, so):
        ops = [("v", "v_add_u32 v%d, s%d, v%d" % (V_EW, S_WR, V_EWB)),
               ("v", "v_add_u32 v%d, s%d, v%d" % (V_ER, S_WR, V_LIN))]
        for tt in range(1, 4):
            ops.append(("v", "v_xor_b32 v%d, %d, v%d" % (V_EW + tt, 32 * tt, V_EW)))
        for tt in range(4):
            for u in range(2):
                b = buf + (2 * tt + u) * 4
                for i in range(4):
                    ops.append(("v", "v_mul_f32 v%d, v%d, v%d" % (b + i, b + i, V_L + u)))
                for i in range(2):
                    ops.append(("v", "v_cvt_pk_bf16_f32 v%d, v%d, v%d" % (b + i, b + 2 * i, b + 2 * i + 1)))
                ops.append(("w", "ds_write_b64 v%d, %s offset:%d" % (V_EW + tt, vr(b, 2), 2048 * u)))
        rd = [("r", "ds_read_b128 %s, v%d offset:%d" % (vr(buf + 16 + 4 * k, 4), V_ER, 1024 * k), ("e", k)) for k in range(4)]
        st = [("s", "buffer_store_dwordx4 %s, v%d, %s, s%d offen offset:%d%s" % (
            vr(buf + 16 + 4 * k, 4), V_DMA + k, srd(SO), so, 1024 * k + 128 * c, stf), ("e", k)) for k in range(4)]
        return ops, rd, st

    def emit(op):
        if op[0] == "v":
            e(op[1])
        elif op[0] == "w":
            a.ds(op[1], "ew")
        elif op[0] == "r":
            a.ds(op[1], op[2])
        elif op[0] == "s":
            a.wait_ds(op[2])
            window()
            e(op[1])
            vm.append(("S",))
        elif op[0] == "setup":
            dma_setup(op[1])
        elif op[0] == "dma":
            dma_issue(op[1])
        elif op[0] == "salu":
            e(op[1])

    def place(slots, pos, ops):
        for p, op in zip(pos, ops):
            slots.setdefault(p, []).append(op)

    EP_V = int(optval(opts, "epv", "5"))
    VEND = int(optval(opts, "vend", "60"))
    VBEG = int(optval(opts, "vbeg", "1"))
    EARLIEST = {2: 0, 3: 0, 4: 0, 5: 0, 6: 1, 7: 1, 8: 2, 9: 2, 10: 3, 11: 4, 12: 5}
    NEEDED = {2: 1, 3: 1, 4: 2, 5: 2, 6: 3, 7: 4, 8: 5, 9: 6, 10: 6, 11: 7, 12: 7}

    def parse(txt):
        out = []
        for part in txt.split(":"):
            toks = ""
            for m in re.finditer(r"([SL]+)(\d*)", part):
                toks += m.group(1) * int(m.group(2) or 1)
            out.append(toks)
        assert len(out) == 6
        return out

    SCH = {"first": parse(optval(opts, "sf", "L%d:L8:L8:L4:S4L4:S4L4" % (4 * (6 - NPRO)))),
           "loop": parse(optval(opts, "sl", "L8:S4L4:L8:L8:S4L4:S4L4")),
           "last": parse(optval(opts, "sz", "L8:S4L4:L8::S4:S4"))}
    pend = {"st": [], "ld": []}

    def spread(n, lo, hi):
        if n == 1:
            return [lo]
        return [lo + (hi - lo) * i // (n - 1) for i in range(n)]

    def side_ops(j):
        kind = cur["kind"]
        slots = {}
        toks = SCH[kind][j]
        epi = j in (4, 5) or (j == 0 and kind != "first")
        lo = max(VBEG, 4)
        npre = 0
        if epi:
            assert not pend["st"]
            buf, c, so = {0: (V_OA, 2, S_PREV), 4: (V_OA, 0, S_HEAD), 5: (V_OB, 1, S_HEAD)}[j]
            ops, rd, st = epi_ops(buf, c, so)
            pend["st"] = st
            place(slots, [i // EP_V for i in range(len(ops))], ops)
            last = (len(ops) - 1) // EP_V
            place(slots, [last + 1] * 4, rd)
            while npre < len(toks) and toks[npre] == "L" and pend["ld"][npre][1] != 0 and pend["ld"][npre][0] == pend["ld"][0][0]:
                npre += 1
            lo = last + 4
        vops = []
        for tk in toks:
            if tk == "S":
                vops.append([pend["st"].pop(0)])
            else:
                n, k = pend["ld"].pop(0)
                assert EARLIEST[n] <= j < NEEDED[n], (kind, n, j)
                vops.append(([("setup", n)] if k == 0 else []) + [("dma", k)])
        pos = (spread(npre, VBEG, lo - 4) if npre else []) + (spread(len(vops) - npre, lo, VEND) if len(vops) > npre else [])
        for p_, ol in zip(pos, vops):
            place(slots, [p_] * len(ol), ol)
        return slots

    def exp_ops(kb, u):
        ops = []
        b = sblk(kb, u)
        for i in range(8):
            ops.append("v_fma_f32 v%d, v%d, s%d, -v%d" % (b + i, b + i, S_C, V_M + u))
        for i in range(8):
            ops.append("v_exp_f32 v%d, v%d" % (b + i, b + i))
        if not msum:
            for i in range(8):
                sr = V_SUM + 2 * u + (i & 1)
                if kb == 0 and i < 4:
                    if i < 2:
                        ops.append("v_add_f32 v%d, v%d, v%d" % (sr, b + i, b + i + 2))
                else:
                    ops.append("v_add_f32 v%d, v%d, v%d" % (sr, sr, b + i))
        for i in range(4):
            ops.append("v_cvt_pk_bf16_f32 v%d, v%d, v%d" % (b + i, b + 2 * i, b + 2 * i + 1))
        return ops

    def xlane(reg, op):
        return ["v_mov_b32 v%d, v%d" % (V_T0, reg),
                "v_permlane32_swap_b32 v%d, v%d" % (reg, V_T0),
                "%s v%d, v%d, v%d" % (op, reg, reg, V_T0),
                "v_mov_b32 v%d, v%d" % (V_T0, reg),
                "v_permlane16_swap_b32 v%d, v%d" % (reg, V_T0),
                "%s v%d, v%d, v%d" % (op, reg, reg, V_T0)]

    PF = int(optval(opts, "kpf", "8"))

    def kstep(c):
        j = c
        e("s_add_u32 s%d, s%d, s%d" % (S_RQ, S_RD, S_WB))
        rd_inc()
        for kk in range(2):
            e("v_add_u32 v%d, s%d, v%d" % (V_WA + 2 + kk, S_RQ, V_KQ + kk))
            e("v_add_u32 v%d, s%d, v%d" % (V_WA + kk, S_RD, V_KQ + kk))
        rd_inc()
        step_begin(j)
        items = [(kt, kk) for kt in range(16) for kk in range(2)]

        def kread(i):
            kt, kk = items[i]
            a.ds("ds_read_b128 %s, v%d offset:%d" % (vr(KFR[i % 12], 4), V_WA + kk, kt * 2048), ("k", i))

        def qread(u, kk):
            a.ds("ds_read_b128 %s, v%d offset:%d" % (vr(V_Q + 8 * kk + 4 * u, 4), V_WA + 2 + kk, u * 2048), ("q", u, kk))

        qread(0, 0)
        kread(0)
        qread(1, 0)
        qread(0, 1)
        kread(1)
        qread(1, 1)
        for i in range(2, PF):
            kread(i)
        slots = side_ops(j)
        maxq = []
        for i in range(32):
            kt, kk = items[i]
            for u in range(2):
                m = 2 * i + u
                a.wait_ds(("k", i))
                a.wait_ds(("q", u, kk))
                acc = vr(stile(kt, u), 4)
                e("v_mfma_f32_16x16x32_bf16 %s, %s, %s, %s" % (acc, vr(KFR[i % 12], 4), vr(V_Q + 8 * kk + 4 * u, 4),
                                                              "0" if (c == 0 and kk == 0) else acc))
                if u == 1 and i + PF < 32:
                    kread(i + PF)
                if c == 2:
                    if kk == 1:
                        b = stile(kt, u)
                        if kt == 0:
                            maxq.append((m + 4, "v_max_f32 v%d, v%d, v%d" % (V_M + u, b, b + 1)))
                        else:
                            maxq.append((m + 4, "v_max3_f32 v%d, v%d, v%d, v%d" % (V_M + u, V_M + u, b, b + 1)))
                        maxq.append((m + 4, "v_max3_f32 v%d, v%d, v%d, v%d" % (V_M + u, V_M + u, b + 2, b + 3)))
                    if maxq and maxq[0][0] <= m:
                        e(maxq.pop(0)[1])
                for op in slots.pop(m, []):
                    emit(op)
        assert not slots
        for _, op in maxq:
            e(op)

    use_last = "nolast" not in opts
    out_bodies = {}

    def head(kind):
        cur["kind"] = kind
        lo_n = NPRO if kind == "first" else 4
        hi_n = 9 if kind == "last" else 13
        pend["ld"] = [(n, k) for n in range(lo_n, hi_n) for k in range(4)]
        if kind != "first":
            vm.clear()
        if kind != "last":
            e("s_add_u32 s%d, s%d, %d" % (S_NEXT, S_HEAD, NWG * HEAD_BYTES))
        kstep(0)
        kstep(1)
        if kind == "loop" and not use_last:
            e("s_cmp_lt_u32 s%d, 3" % S_IT)
            e("s_cselect_b32 s%d, s%d, 0" % (SQ + 2, S_SZ))
            e("s_cselect_b32 s%d, s%d, 0" % (SK + 2, S_SZ))
        kstep(2)
        assert not pend["st"]
        stamp(VS2, 0)
        for u in range(2):
            for op in xlane(V_M + u, "v_max_f32"):
                e(op)
            e("v_mul_f32 v%d, s%d, v%d" % (V_M + u, S_C, V_M + u))
        PRE = int(optval(opts, "pre", "1"))
        for kb in range(PRE):
            for u in range(2):
                for op in exp_ops(kb, u):
                    e(op)

        VPF = int(optval(opts, "vpf", "6"))
        LACC = [sblk(0, 0) + 4, sblk(0, 1) + 4]
        for c in range(3):
            j = 3 + c
            buf = V_OB if c == 1 else V_OA
            for tt in range(4):
                e("v_add_u32 v%d, s%d, v%d" % (V_WA + tt, S_RD, V_VB + tt))
            rd_inc()
            step_begin(j)
            items = [(kb, tt) for kb in range(8) for tt in range(4)]

            def vread(i):
                kb, tt = items[i]
                for jj in range(2):
                    a.ds("ds_read_b64_tr_b16 %s, v%d offset:%d" % (vr(VFR[i % 8] + 2 * jj, 2), V_WA + tt,
                                                                  kb * 4096 + jj * 2048), ("v", i))

            for i in range(VPF):
                vread(i)
            slots = side_ops(j)
            if c == 0:
                for kb in range(8):
                    fill = []
                    if kb + PRE < 8:
                        fill = exp_ops(kb + PRE, 0) + exp_ops(kb + PRE, 1)
                    elif kb + PRE == 8 and not msum:
                        for u in range(2):
                            fill.append("v_add_f32 v%d, v%d, v%d" % (V_L + u, V_SUM + 2 * u, V_SUM + 2 * u + 1))
                            fill += xlane(V_L + u, "v_add_f32")
                            fill.append("v_rcp_f32 v%d, v%d" % (V_L + u, V_L + u))
                    n = len(fill)
                    for q in range(8):
                        for op in fill[n * q // 8:n * (q + 1) // 8]:
                            slots.setdefault(8 * kb + q, []).append(("v", op))
            for i in range(32):
                kb, tt = items[i]
                for u in range(2):
                    m = 2 * i + u
                    a.wait_ds(("v", i))
                    acc = vr(buf + (2 * tt + u) * 4, 4)
                    e("v_mfma_f32_16x16x32_bf16 %s, %s, %s, %s" % (acc, vr(VFR[i % 8], 4), vr(sblk(kb, u), 4),
                                                                  "0" if kb == 0 else acc))
                    if u == 1 and i + VPF < 32:
                        vread(i + VPF)
                    if msum and c == 0 and tt in (1, 3) and u == 1:
                        uu = tt >> 1
                        la = vr(LACC[uu], 4)
                        e("v_mfma_f32_16x16x32_bf16 %s, %s, %s, %s" % (la, vr(V_ONE, 4), vr(sblk(kb, uu), 4),
                                                                      "0" if kb == 0 else la))
                    for op in slots.pop(m, []):
                        emit(op)
            assert not slots
            if msum and c == 0:
                for u in range(2):
                    e("v_rcp_f32 v%d, v%d" % (V_L + u, LACC[u]))
        assert not pend["ld"] and not pend["st"]
        stamp(VS2, 1)
        if stamps:
            e("s_add_u32 s%d, s%d, 16" % (S_IT16, S_IT16))
        e("s_mov_b32 s%d, s%d" % (S_PREV, S_HEAD))
        if kind != "last":
            e("s_mov_b32 s%d, s%d" % (S_HEAD, S_NEXT))
            e("s_add_u32 s%d, s%d, 1" % (S_IT, S_IT))
        out_bodies[kind] = list(vm)

    head("first")
    a.label("L_head")
    head("loop")
    e("s_cmp_lt_u32 s%d, %d" % (S_IT, 3 if use_last else 4))
    e("s_cbranch_scc1 L_head")
    if use_last:
        head("last")
    win_on[0] = False
    if not use_last:
        e("s_waitcnt vmcnt(%d)" % count_after(vm, ("T", 9)))
    e("s_add_u32 s%d, s%d, %d" % (S_WR, S_WB, CH))
    ops, rd, st = epi_ops(V_OA, 2, S_PREV)
    for op in ops + rd + st:
        emit(op)
    a.skip = ()
    if stamps:
        e("s_waitcnt vmcnt(0)")
    if stamps:
        e("s_memrealtime s[52:53]")
        e("s_memtime s[54:55]")
        e("s_waitcnt lgkmcnt(0)")
        for i, sr in enumerate((48, 50, 52, 54)):
            e("v_writelane_b32 v%d, s%d, %d" % (VS2, sr, 12 + i))
        e("s_mov_b32 s56, s62")
        e("s_and_b32 s57, s63, 0xffff")
        e("s_mov_b32 s58, 0x1000000")
        e("s_mov_b32 s59, 0x20000")
        e("s_lshl_b32 s60, s2, 3")
        e("s_add_u32 s60, s60, s%d" % S_WAVE)
        e("s_lshl_b32 s60, s60, 10")
        e("v_lshrrev_b32 v28, 2, v%d" % V_LIN)
        e("buffer_store_dword v%d, v28, s[56:59], s60 offen" % VS0)
        e("buffer_store_dword v%d, v28, s[56:59], s60 offen offset:256" % VS1)
        e("buffer_store_dword v%d, v28, s[56:59], s60 offen offset:512" % VS2)
        e("s_waitcnt vmcnt(0)")
    a.label("L_end")
    e("s_endpgm")
    if bodies is None:
        return gen(ldf.strip(), stf.strip(), opts, bodies=out_bodies)
    assert bodies == out_bodies
    return HEADER % (NWG, LDS_BYTES, NAME, NAME, NAME) + a.text() + FOOTER % (NAME, 256, 80, 256)


if __name__ == "__main__":
    out = sys.argv[1] if len(sys.argv) > 1 else "cdna_kernels/%s.s" % NAME
    ld = sys.argv[2] if len(sys.argv) > 2 else "nt"
    st = sys.argv[3] if len(sys.argv) > 3 else "sc1"
    opts = sys.argv[4].split(",") if len(sys.argv) > 4 else ()
    open(out, "w").write(gen(ld, st, opts))
    print("wrote", out)
```

```python
import re

TRANS = ("v_exp_f32", "v_log_f32", "v_rcp_f32", "v_rsq_f32", "v_sqrt_f32", "v_sin_f32", "v_cos_f32")


def _regs(tok):
    tok = tok.strip()
    tok = tok.lstrip("-")
    if tok.startswith("abs(") and tok.endswith(")"):
        tok = tok[4:-1]
    if tok.startswith("|") and tok.endswith("|"):
        tok = tok[1:-1]
    m = re.fullmatch(r"([vsa])(\d+)", tok)
    if m:
        return [(m.group(1), int(m.group(2)))]
    m = re.fullmatch(r"([vsa])\[(\d+):(\d+)\]", tok)
    if m:
        return [(m.group(1), i) for i in range(int(m.group(2)), int(m.group(3)) + 1)]
    if tok in ("vcc", "exec", "m0", "scc"):
        return [(tok, 0)]
    return []


class Ins:
    __slots__ = ("text", "op", "rd", "wr", "kind", "srcc", "states", "comment")

    def __init__(self, text, comment=""):
        self.text = text
        self.comment = comment
        body = text.split(";")[0].strip()
        parts = body.split(None, 1)
        self.op = parts[0]
        ops = []
        if len(parts) > 1:
            depth = 0
            cur = ""
            for ch in parts[1]:
                if ch == "[":
                    depth += 1
                if ch == "]":
                    depth -= 1
                if ch == "," and depth == 0:
                    ops.append(cur)
                    cur = ""
                else:
                    cur += ch
            ops.append(cur)
        ops = [o.strip() for o in ops]
        if ops:
            ops[-1] = ops[-1].split()[0] if ops[-1].split() else ops[-1]
        op = self.op
        self.srcc = []
        self.states = 1
        rd, wr = [], []
        if op.endswith(":"):
            self.kind = "label"
            self.states = 0
        elif op.startswith("."):
            self.kind = "dir"
            self.states = 0
        elif op == "s_nop":
            self.kind = "nop"
            self.states = int(ops[0], 0) + 1
        elif op.startswith("v_mfma"):
            self.kind = "mfma"
            wr = _regs(ops[0])
            rd = _regs(ops[1]) + _regs(ops[2]) + _regs(ops[3])
            self.srcc = _regs(ops[3])
        elif op.startswith("ds_read"):
            self.kind = "ds"
            wr = _regs(ops[0])
            rd = _regs(ops[1])
        elif op.startswith("ds_write"):
            self.kind = "ds"
            rd = sum((_regs(o) for o in ops), [])
        elif op.startswith("buffer_load"):
            self.kind = "vmem"
            if " lds" in body:
                rd = sum((_regs(o) for o in ops), []) + [("m0", 0)]
                self.kind = "dma"
            else:
                wr = _regs(ops[0])
                rd = sum((_regs(o) for o in ops[1:]), [])
        elif op.startswith("buffer_store"):
            self.kind = "vstore"
            rd = sum((_regs(o) for o in ops), [])
            self.srcc = _regs(ops[0])
        elif op.startswith("v_permlane") and "swap" in op:
            self.kind = "permlane"
            wr = _regs(ops[0]) + _regs(ops[1])
            rd = list(wr)
        elif op.startswith("v_readfirstlane") or op.startswith("v_readlane"):
            self.kind = "readlane"
            wr = _regs(ops[0])
            rd = sum((_regs(o) for o in ops[1:]), [])
        elif op.startswith("v_cmp"):
            self.kind = "valu"
            wr = _regs(ops[0])
            rd = sum((_regs(o) for o in ops[1:]), [])
        elif op.startswith("v_"):
            self.kind = "trans" if any(op.startswith(t) for t in TRANS) else "valu"
            wr = _regs(ops[0])
            rd = sum((_regs(o) for o in ops[1:]), [])
            if op.startswith("v_fmac") or op.startswith("v_pk_fmac"):
                rd += wr
        elif op.startswith("s_memtime") or op.startswith("s_memrealtime"):
            self.kind = "smem"
            wr = _regs(ops[0])
        elif op.startswith("s_load"):
            self.kind = "smem"
            wr = _regs(ops[0])
            rd = _regs(ops[1])
        elif op.startswith("s_"):
            self.kind = "salu"
            if op.startswith("s_cmp") or op.startswith("s_cbranch") or op in (
                "s_branch", "s_waitcnt", "s_barrier", "s_endpgm", "s_setprio", "s_sleep"):
                rd = sum((_regs(o) for o in ops), [])
            else:
                wr = _regs(ops[0])
                rd = sum((_regs(o) for o in ops[1:]), [])
        else:
            raise ValueError("unknown op " + text)
        self.rd = set(rd)
        self.wr = set(wr)
        self.srcc = set(self.srcc)


VALU_KINDS = ("valu", "trans", "permlane", "readlane")


def mfma_passes(op):
    if "32x32x16" in op:
        return 8
    if "16x16x32" in op:
        return 4
    raise ValueError(op)


D_LAT = {4: 8, 8: 12}
D_OVL = {4: 6, 8: 10}
C_WAR = {4: 3, 8: 7}


def need_states(p, c):
    n = 0
    pv = {r for r in p.wr if r[0] in "va"}
    ps = {r for r in p.wr if r[0] == "s" or r[0] == "vcc"}
    if p.kind in VALU_KINDS:
        if c.kind == "mfma" and pv & c.rd:
            n = max(n, 2)
        if c.kind == "permlane" and pv & c.rd:
            n = max(n, 2)
        if c.kind == "readlane" and pv & c.rd:
            n = max(n, 1)
        if p.kind == "trans" and c.kind in ("valu", "permlane", "readlane", "mfma") and pv & c.rd:
            n = max(n, 1 if c.kind != "mfma" else 2)
        if ps:
            if c.kind in ("vmem", "dma", "vstore") and ps & c.rd:
                n = max(n, 5)
            if c.kind in VALU_KINDS and ps & c.rd:
                n = max(n, 2)
            if c.kind == "salu" and ps & c.rd:
                n = max(n, 4)
    if p.kind == "mfma":
        k = mfma_passes(p.op)
        if c.kind == "mfma":
            ab = c.rd - c.srcc
            if pv & ab:
                n = max(n, D_LAT[k])
            if pv & c.srcc:
                if pv != c.srcc or p.op != c.op:
                    n = max(n, D_OVL[k])
            elif pv & c.wr:
                n = max(n, D_OVL[k])
        elif c.kind in VALU_KINDS or c.kind in ("ds", "vmem", "dma", "vstore"):
            if pv & (c.rd | c.wr):
                n = max(n, D_LAT[k])
            if c.kind in VALU_KINDS and p.srcc & c.wr:
                n = max(n, C_WAR[k])
    if p.kind == "salu" and ("m0", 0) in p.wr and c.kind == "dma":
        n = max(n, 1)
    if p.kind == "vstore" and len(p.srcc) >= 3 and p.srcc & c.wr:
        n = max(n, 2 if c.kind in VALU_KINDS else 1)
    return n


class Asm:
    def __init__(self):
        self.ins = []
        self.lgkm = []
        self.pad_count = 0
        self.skip = ()

    def e(self, text, comment=""):
        if self.skip and text.startswith(self.skip):
            return None
        i = Ins(text, comment)
        dist = 0
        need = 0
        for p in reversed(self.ins[-40:]):
            if dist >= 20:
                break
            req = need_states(p, i)
            if req > dist:
                need = max(need, req - dist)
            dist += p.states
        while need > 0:
            k = min(need, 16)
            self.ins.append(Ins("s_nop %d" % (k - 1), "hazard pad"))
            self.pad_count += 1
            need -= k
        self.ins.append(i)
        return i

    def ds(self, text, tag=None):
        if self.skip and text.startswith(self.skip):
            return
        if len(self.lgkm) >= 15:
            self.e("s_waitcnt lgkmcnt(14)", "counter cap")
            self.lgkm = self.lgkm[len(self.lgkm) - 14:]
        self.e(text)
        self.lgkm.append(tag)

    def wait_ds(self, tag):
        idx = None
        for i, t in enumerate(self.lgkm):
            if t == tag:
                idx = i
        if idx is None:
            return
        n = len(self.lgkm) - 1 - idx
        assert n <= 15, "lgkmcnt overflow"
        self.e("s_waitcnt lgkmcnt(%d)" % n)
        self.lgkm = self.lgkm[idx + 1:]

    def wait_ds_all(self, force=False):
        if self.lgkm or force:
            self.e("s_waitcnt lgkmcnt(0)")
        self.lgkm = []

    def align8(self, pad="s_nop 0"):
        import subprocess
        texts = sorted({i.text for i in self.ins if i.kind not in ("label", "dir")})
        labels = [i.text for i in self.ins if i.kind == "label"]
        r = subprocess.run(["llvm-mc", "-arch=amdgcn", "-mcpu=gfx950", "-show-encoding"],
                           input="\n".join(texts + labels) + "\n", capture_output=True, text=True)
        assert r.returncode == 0, r.stderr
        enc = [l for l in r.stdout.splitlines() if "encoding:" in l]
        assert len(enc) == len(texts)
        size = {t: l.split("encoding:")[1].count(",") + 1 for t, l in zip(texts, enc)}
        out, run = [], []
        nprom = npad = 0
        for i in self.ins:
            if i.kind == "dir":
                out.append(i)
                continue
            if i.kind != "label" and size[i.text] == 4:
                run.append(len(out))
                out.append(i)
                continue
            if len(run) % 2:
                cand = [k for k in run[::2] if out[k].op.startswith("v_") and not out[k].op.startswith("v_readfirstlane")]
                if cand:
                    k = cand[-1]
                    o = out[k]
                    out[k] = Ins(o.text.replace(o.op, o.op + "_e64", 1), o.comment)
                    nprom += 1
                else:
                    out.append(Ins(pad, "align"))
                    npad += 1
            run = []
            out.append(i)
        self.ins = out
        return nprom, npad

    def label(self, name):
        self.e(name + ":")

    def text(self):
        out = []
        for i in self.ins:
            if i.kind == "label":
                out.append(i.text)
            else:
                out.append("    " + i.text + (("    ; " + i.comment) if i.comment else ""))
        return "\n".join(out) + "\n"
```

```python
import math
import re
import struct
import sys

from asmlib import Asm

NAME = "standalone__mha_softmax__near_ridge"
HEAD_BYTES = 256 * 192 * 2
CH = 32768
TOTAL = 1024 * HEAD_BYTES
NSLOT = 5
NWG = 256
LDS_BYTES = 163840

HEADER = """; MHA softmax forward, B*H=1024 heads, Sq=Sk=256, D=192, bf16.
; One persistent 8-wave workgroup per CU, 4 heads each.  Q/K/V stream as 64-column chunks through a 5-slot LDS ring
; @launch grid=(%d,1,1) block=(512,1,1) lds=%d
.amdgcn_target "amdgcn-amd-amdhsa--gfx950"
.text
.globl %s_kernel
.p2align 8
.type %s_kernel,@function
%s_kernel:
"""

FOOTER = """.section .rodata,"a"
.p2align 6
.amdhsa_kernel %s_kernel
  .amdhsa_next_free_vgpr %d
  .amdhsa_next_free_sgpr %d
  .amdhsa_accum_offset %d
  .amdhsa_group_segment_fixed_size 0
  .amdhsa_kernarg_size 48
  .amdhsa_user_sgpr_count 2
  .amdhsa_user_sgpr_kernarg_segment_ptr 1
  .amdhsa_system_sgpr_workgroup_id_x 1
.end_amdhsa_kernel
"""


def f32bits(x):
    return struct.unpack("<I", struct.pack("<f", x))[0]


def vr(base, n):
    return "v[%d:%d]" % (base, base + n - 1)


ORDER = [(0, 0), (1, 0), (0, 1), (1, 1), (0, 2), (1, 2), (2, 0), (2, 1), (2, 2)]
ISSUE = {0: [4], 1: [5, 6], 2: [7, 8], 3: [9, 10], 4: [11], 5: [12]}
NEED = {0: [0, 1], 1: [2, 3], 2: [4, 5], 3: [6], 4: [7], 5: [8]}


def optval(opts, key, default):
    for o in opts:
        if o.startswith(key + "="):
            return o[len(key) + 1:]
    return default


def gen(ldf="nt", stf="sc1", opts=(), bodies=None):
    a = Asm()
    e = a.e
    stamps = "stamp" in opts
    msum = "msum" in opts
    SQ, SK, SV, SO = 12, 16, 20, 24
    S_HEAD, S_NEXT, S_PREV, S_WB, S_IT, S_C, S_WAVE, S_T = 32, 33, 34, 35, 36, 37, 38, 39
    S_WR, S_WEND, S_RD, S_SZ, S_RQ, S_RK = 40, 41, 42, 43, 28, 29
    srd = lambda b: "s[%d:%d]" % (b, b + 3)
    V_DMA = 1
    V_KQ = 5
    V_VB = 7
    V_WA = 11
    V_EWB = 15
    V_LIN = 16
    V_M = 17
    V_L = 19
    V_SUM = 21
    V_EW = 21
    V_T0 = 25
    V_ER = 25
    V_ONE = 26
    V_ST = 30
    V_OA, V_OB = 32, 64
    V_Q = 96
    KFR = [64 + 4 * i for i in range(8)] + [112 + 4 * i for i in range(4)]
    VFR = [96 + 4 * i for i in range(8)]
    V_S = 128
    T = 128

    ldf = (" " + ldf) if ldf else ""
    stf = (" " + stf) if stf else ""
    vm = []

    e("s_cmp_ge_u32 s2, %d" % NWG)
    e("s_cbranch_scc1 L_end")
    if optval(opts, "only", ""):
        e("s_and_b32 s3, s2, 7")
        e("s_lshr_b32 s3, %s, s3" % optval(opts, "only", ""))
        e("s_and_b32 s3, s3, 1")
        e("s_cbranch_scc0 L_end")
    e("s_load_dwordx8 s[4:11], s[0:1], 0")
    t = lambda i: "v%d" % (T + i)
    e("v_lshrrev_b32 %s, 6, v0" % t(0))
    e("v_and_b32 v0, 63, v0")
    e("v_readfirstlane_b32 s%d, %s" % (S_WAVE, t(0)))
    e("v_lshrrev_b32 %s, 3, v0" % t(1))
    e("v_lshl_add_u32 %s, %s, 5, %s" % (t(2), t(0), t(1)))
    PERM = int(optval(opts, "perm", "0"))
    if PERM == -1:
        e("s_load_dwordx2 s[30:31], s[0:1], 32")
        e("s_waitcnt lgkmcnt(0)")
        e("s_load_dword s30, s[30:31], 0")
        e("s_waitcnt lgkmcnt(0)")
        e("s_lshl_b32 s31, s30, 3")
    e("v_and_b32 %s, 7, v0" % t(3))
    e("v_xor_b32 %s, %s, %s" % (t(3), t(3), t(1)))
    if PERM:
        assert PERM & 1
        e("v_mul_u32_u24 %s, %s, %s" % (t(2), PERM if PERM > 0 else "s30", t(2)))
        for k in range(4):
            if k:
                e("v_add_u32 %s, %s, %s" % (t(2), 8 * PERM if PERM > 0 else "s31", t(2)))
            e("v_and_b32 %s, 0xff, %s" % (t(4), t(2)))
            e("v_mul_u32_u24 %s, 0x180, %s" % (t(4), t(4)))
            e("v_lshl_add_u32 v%d, %s, 4, %s" % (V_DMA + k, t(3), t(4)))
    else:
        e("v_mul_u32_u24 %s, 0x180, %s" % (t(2), t(2)))
        e("v_lshl_add_u32 v%d, %s, 4, %s" % (V_DMA, t(3), t(2)))
        for k in range(1, 4):
            e("v_add_u32 v%d, 0x%x, v%d" % (V_DMA + k, 2048 * k, V_DMA))
    KOFF = 0 if PERM else 1024
    e("s_lshl_b32 s%d, s%d, 12" % (S_WB, S_WAVE))
    HA, HB, HS = {"0": (1, 8, 256), "2": (32, 1, 256), "3": (4, 32, 1), "4": (128, 4, 1), "5": (128, 1, 32)}[optval(opts, "map", "0")]
    HX = int(optval(opts, "hx", "0"))
    e("s_xor_b32 s%d, s2, %d" % (S_T, HX))
    e("s_and_b32 s%d, s%d, 7" % (S_HEAD, S_T))
    e("s_lshr_b32 s%d, s%d, 3" % (S_T, S_T))
    e("s_mul_i32 s%d, s%d, %d" % (S_HEAD, S_HEAD, HA * HEAD_BYTES))
    e("s_mul_i32 s%d, s%d, %d" % (S_T, S_T, HB * HEAD_BYTES))
    e("s_add_u32 s%d, s%d, s%d" % (S_HEAD, S_HEAD, S_T))
    e("s_mov_b32 s%d, %d" % (S_SZ, TOTAL))
    e("s_mov_b32 s%d, s%d" % (S_WR, S_WB))
    e("s_add_u32 s%d, s%d, %d" % (S_WEND, S_WB, NSLOT * CH))
    e("s_waitcnt lgkmcnt(0)")
    for (b, p) in ((SQ, 4), (SK, 6), (SV, 8), (SO, 10)):
        e("s_mov_b32 s%d, s%d" % (b, p))
        e("s_and_b32 s%d, s%d, 0xffff" % (b + 1, p + 1))
        e("s_mov_b32 s%d, %d" % (b + 2, TOTAL))
        e("s_mov_b32 s%d, 0x20000" % (b + 3))

    dma_state = {}

    def dma_setup(n):
        h = S_NEXT if n >= 9 else S_HEAD
        tens, c = ORDER[n % 9]
        if c:
            e("s_add_u32 s%d, s%d, %d" % (S_T, h, 128 * c))
            so = S_T
        else:
            so = h
        e("s_mov_b32 m0, s%d" % S_WR)
        e("s_add_u32 s%d, s%d, %d" % (S_WR, S_WR, CH))
        e("s_cmp_eq_u32 s%d, s%d" % (S_WR, S_WEND))
        e("s_cselect_b32 s%d, s%d, s%d" % (S_WR, S_WB, S_WR))
        dma_state["cur"] = (n, (SQ, SK, SV)[tens], so)

    WIN = int(optval(opts, "win", "0"))
    win_on = [False]

    WINLO = int(optval(opts, "winlo", "0"))
    wl = [0]

    def window():
        if WIN and win_on[0]:
            if WINLO:
                wl[0] += 1
                e("s_cbranch_vccnz L_w%d" % wl[0])
                e("s_waitcnt vmcnt(%d)" % (WINLO - 1))
                a.label("L_w%d" % wl[0])
            e("s_waitcnt vmcnt(%d)" % (WIN - 1))

    def dma_issue(k):
        n, srdb, so = dma_state["cur"]
        window()
        e("buffer_load_dwordx4 v%d, %s, s%d offen offset:%d%s lds" % (V_DMA + k, srd(srdb), so, KOFF * k, ldf))
        if PERM and k < 3:
            e("s_add_u32 m0, m0, 1024")
        vm.append(("T", n))

    NPRO = int(optval(opts, "npro", "3"))
    for n in range(NPRO):
        if n == 2 and "pbar" in opts:
            e("s_barrier")
        dma_setup(n)
        for k in range(4):
            dma_issue(k)
    win_on[0] = True

    e("v_and_b32 %s, 15, v0" % t(1))
    e("v_lshrrev_b32 %s, 4, v0" % t(2))
    e("v_and_b32 %s, 7, v0" % t(3))
    e("v_xor_b32 %s, %s, %s" % (t(4), t(2), t(3)))
    e("v_lshlrev_b32 %s, 7, %s" % (t(5), t(1)))
    e("v_lshl_add_u32 v%d, %s, 4, %s" % (V_KQ, t(4), t(5)))
    e("v_xor_b32 v%d, 64, v%d" % (V_KQ + 1, V_KQ))
    e("v_lshrrev_b32 %s, 1, %s" % (t(4), t(2)))
    e("v_xor_b32 %s, %s, %s" % (t(4), t(4), t(3)))
    e("v_lshl_add_u32 %s, %s, 4, %s" % (t(4), t(4), t(5)))
    e("v_and_b32 %s, 1, %s" % (t(6), t(2)))
    e("v_lshl_add_u32 v%d, %s, 3, %s" % (V_EWB, t(6), t(4)))
    e("v_lshlrev_b32 v%d, 4, v0" % V_LIN)
    e("v_lshrrev_b32 %s, 2, v0" % t(1))
    e("v_and_b32 %s, 7, %s" % (t(3), t(1)))
    e("v_bfe_u32 %s, v0, 1, 1" % t(4))
    e("v_xor_b32 %s, %s, %s" % (t(4), t(4), t(3)))
    e("v_lshlrev_b32 %s, 7, %s" % (t(5), t(1)))
    e("v_lshl_add_u32 %s, %s, 4, %s" % (t(4), t(4), t(5)))
    e("v_and_b32 %s, 1, v0" % t(6))
    e("v_lshl_add_u32 v%d, %s, 3, %s" % (V_VB, t(6), t(4)))
    for tt in range(1, 4):
        e("v_xor_b32 v%d, %d, v%d" % (V_VB + tt, 32 * tt, V_VB))
    if msum:
        for i in range(4):
            e("v_mov_b32 v%d, 0x3f803f80" % (V_ONE + i))
    e("s_mov_b32 s%d, 0x%08x" % (S_C, f32bits(192 ** -0.5 * math.log2(math.e))))
    e("s_mov_b32 s%d, 0" % S_IT)
    e("s_mov_b32 s%d, 0" % S_RD)
    e("s_mov_b32 s%d, 0" % S_PREV)
    if WINLO:
        e("s_and_b32 vcc_lo, s%d, %d" % (S_WAVE, int(optval(opts, "winmask", "4"))))
        e("s_mov_b32 vcc_hi, 0")
    if "prio" in opts:
        e("s_cmp_ge_u32 s%d, 4" % S_WAVE)
        e("s_cbranch_scc0 L_prio")
        e("s_setprio 1")
        a.label("L_prio")

    KIDX = {"first": 0, "loop": 1, "last": 2}

    def stamp(idx, rt=False):
        if stamps:
            e("%s s[%d:%d]" % ("s_memrealtime" if rt else "s_memtime", 44 + 2 * idx, 45 + 2 * idx))
    stamp(18)
    stamp(20, True)

    sk = []
    if "nomfma" in opts:
        sk += ["v_mfma"]
    if "noexp" in opts:
        sk += ["v_exp", "v_fma", "v_add_f32", "v_cvt", "v_max", "v_mul_f32", "v_rcp", "v_permlane"]
    sk += [x for x in optval(opts, "skip", "").split("+") if x]
    a.skip = tuple(sk)

    def count_after(lst, tag):
        idx = max(i for i, x in enumerate(lst) if x == tag)
        return len(lst) - 1 - idx

    def rd_inc():
        e("s_add_u32 s%d, s%d, %d" % (S_RD, S_RD, CH))
        e("s_cmp_eq_u32 s%d, %d" % (S_RD, NSLOT * CH))
        e("s_cselect_b32 s%d, 0, s%d" % (S_RD, S_RD))

    cur = {"kind": None}
    PRED = {"first": [], "loop": ["first", "loop"], "last": ["loop"]}

    def wait_for(n):
        if vm.count(("T", n)) == 4:
            return count_after(vm, ("T", n))
        assert ("T", n) not in vm, n
        if bodies is None:
            return 0
        return min(count_after(bodies[p] + vm, ("T", n + 9)) for p in PRED[cur["kind"]])

    def sblk(kb, u):
        return V_S + (2 * kb + u) * 8

    def stile(kt, u):
        return sblk(kt >> 1, u) + 4 * (kt & 1)

    def epi_ops(buf, c, so):
        ops = [("v", "v_add_u32 v%d, s%d, v%d" % (V_EW, S_WR, V_EWB)),
               ("v", "v_add_u32 v%d, s%d, v%d" % (V_ER, S_WR, V_LIN))]
        for tt in range(1, 4):
            ops.append(("v", "v_xor_b32 v%d, %d, v%d" % (V_EW + tt, 32 * tt, V_EW)))
        for tt in range(4):
            for u in range(2):
                b = buf + (2 * tt + u) * 4
                for i in range(4):
                    ops.append(("v", "v_mul_f32 v%d, v%d, v%d" % (b + i, b + i, V_L + u)))
                for i in range(2):
                    ops.append(("v", "v_cvt_pk_bf16_f32 v%d, v%d, v%d" % (b + i, b + 2 * i, b + 2 * i + 1)))
                ops.append(("w", "ds_write_b64 v%d, %s offset:%d" % (V_EW + tt, vr(b, 2), 2048 * u)))
        rd = [("r", "ds_read_b128 %s, v%d offset:%d" % (vr(buf + 16 + 4 * k, 4), V_ER, 1024 * k), ("e", k)) for k in range(4)]
        st = [("s", "buffer_store_dwordx4 %s, v%d, %s, s%d offen offset:%d%s" % (
            vr(buf + 16 + 4 * k, 4), V_DMA + k, srd(SO), so, KOFF * k + 128 * c, stf), ("e", k)) for k in range(4)]
        return ops, rd, st

    def emit(op):
        if op[0] == "v":
            e(op[1])
        elif op[0] == "w":
            a.ds(op[1], "ew")
        elif op[0] == "r":
            a.ds(op[1], op[2])
        elif op[0] == "s":
            a.wait_ds(op[2])
            window()
            e(op[1])
            vm.append(("S",))
        elif op[0] == "setup":
            if op[1] in (5, 7, 9):
                for u in range(2):
                    for kk in range(2):
                        a.wait_ds(("q", (op[1] - 5) // 2, u, kk))
            dma_setup(op[1])
        elif op[0] == "dma":
            dma_issue(op[1])
        elif op[0] == "fn":
            op[1]()

    EP_V = int(optval(opts, "epv", "5"))
    VEND = int(optval(opts, "vend", "60"))
    VBEG = int(optval(opts, "vbeg", "1"))
    PF = int(optval(opts, "kpf", "8"))
    VPF = int(optval(opts, "vpf", "6"))
    PRE = int(optval(opts, "pre", "1"))
    EBK = int(optval(opts, "ebk", "52"))
    EB2 = int(optval(opts, "eb2", "58"))
    EBV = int(optval(opts, "ebv", "57"))
    EB = [EBK, EBK, EB2, EBV, EBV, EBV]
    NB = optval(opts, "nb", "")
    MB = int(optval(opts, "mb", "-1"))
    EARLIEST = {2: 0, 3: 0, 4: 0, 5: 0, 6: 1, 7: 1, 8: 2, 9: 2, 10: 3, 11: 4, 12: 5}

    def parse(txt):
        out = []
        for part in txt.split(":"):
            toks = ""
            for m in re.finditer(r"([SL]+)(\d*)", part):
                toks += m.group(1) * int(m.group(2) or 1)
            out.append(toks)
        assert len(out) == 6
        return out

    SCH = {"first": parse(optval(opts, "sf", "L%d:L8:L8:L4:S4L4:S4L4" % (4 * (6 - NPRO)))),
           "loop": parse(optval(opts, "sl", "L8:S4L4:L8:L8:S4L4:S4L4")),
           "last": parse(optval(opts, "sz", "L8:S4L4:L4:L4:S4:S4"))}
    pend = {"st": [], "ld": []}

    def spread(n, lo, hi):
        if n == 1:
            return [lo]
        return [lo + (hi - lo) * i // (n - 1) for i in range(n)]

    def side_ops(j, vend):
        kind = cur["kind"]
        out = []
        toks = SCH[kind][j]
        epi = j in (4, 5) or (j == 0 and kind != "first")
        lo = VBEG
        npre = 0
        if epi:
            assert not pend["st"]
            buf, c, so = {0: (V_OA, 2, S_PREV), 4: (V_OA, 0, S_HEAD), 5: (V_OB, 1, S_HEAD)}[j]
            ops, rd, st = epi_ops(buf, c, so)
            pend["st"] = st
            out += [(i // EP_V, op) for i, op in enumerate(ops)]
            last = (len(ops) - 1) // EP_V
            out += [(last + 1, op) for op in rd]
            while npre < len(toks) and toks[npre] == "L" and pend["ld"][npre][1] != 0 and pend["ld"][npre][0] == pend["ld"][0][0]:
                npre += 1
            nxt = [n for n, k in pend["ld"] if k == 0]
            assert not nxt or (EARLIEST[nxt[0]] <= j and nxt[0] not in (5, 7, 9)), (kind, j, nxt)
            lo = last + 4
        vops = []
        staged = not epi
        for tk in toks:
            if tk == "S":
                vops.append([pend["st"].pop(0)])
            else:
                n, k = pend["ld"].pop(0)
                assert EARLIEST[n] <= j, (kind, n, j)
                ol = []
                if k == 0:
                    if not staged:
                        ol.append(("fn", lambda: a.wait_ds(("e", 3))))
                        staged = True
                    ol.append(("setup", n))
                vops.append(ol + [("dma", k)])
        pos = (spread(npre, VBEG, lo - 4) if npre else []) + (spread(len(vops) - npre, lo, vend) if len(vops) > npre else [])
        for p_, ol in zip(pos, vops):
            out += [(p_, op) for op in ol]
        return out

    def exp_ops(kb, u):
        ops = []
        b = sblk(kb, u)
        for i in range(8):
            ops.append("v_fma_f32 v%d, v%d, s%d, -v%d" % (b + i, b + i, S_C, V_M + u))
        for i in range(8):
            ops.append("v_exp_f32 v%d, v%d" % (b + i, b + i))
        for i in range(4):
            ops.append("v_cvt_pk_bf16_f32 v%d, v%d, v%d" % (b + i, b + 2 * i, b + 2 * i + 1))
        return ops

    def xlane(reg, op):
        return ["v_mov_b32 v%d, v%d" % (V_T0, reg),
                "v_permlane32_swap_b32 v%d, v%d" % (reg, V_T0),
                "%s v%d, v%d, v%d" % (op, reg, reg, V_T0),
                "v_mov_b32 v%d, v%d" % (V_T0, reg),
                "v_permlane16_swap_b32 v%d, v%d" % (reg, V_T0),
                "%s v%d, v%d, v%d" % (op, reg, reg, V_T0)]

    def kitems(j):
        it = [(kt, kk) for kk in range(2) for kt in range(8)]
        if j == 2:
            return it + [(kt, kk) for kt in range(8, 16) for kk in range(2)]
        return it + [(kt, kk) for kk in range(2) for kt in range(8, 16)]

    VITEMS = [(kb, tt) for kb in range(8) for tt in range(4)]

    def frags(j):
        j6 = j % 6
        out = []
        if j6 < 3:
            it = kitems(j6)
            for i, (kt, kk) in enumerate(it):
                r = KFR[(32 * j6 + i) % 12]
                out.append(dict(tag=("k", j6, i), regs=set(range(r, r + 4)), first=64 * j + 2 * i, last=64 * j + 2 * i + 1,
                                lead=2 * PF - 1, ins=["ds_read_b128 %s, v%d offset:%d" % (vr(r, 4), V_WA + kk, kt * 2048)]))
            for kk in range(2):
                idx = [i for i, x in enumerate(it) if x[1] == kk]
                for u in range(2):
                    r = V_Q + 8 * kk + 4 * u
                    out.append(dict(tag=("q", j6, u, kk), regs=set(range(r, r + 4)), first=64 * j + 2 * idx[0] + u,
                                    last=64 * j + 2 * idx[-1] + u, lead=2 * PF + 1,
                                    ins=["ds_read_b128 %s, v%d offset:%d" % (vr(r, 4), V_WA + 2 + kk, u * 2048)]))
        else:
            for i, (kb, tt) in enumerate(VITEMS):
                r = VFR[i % 8]
                out.append(dict(tag=("v", j6, i), regs=set(range(r, r + 4)), first=64 * j + 2 * i, last=64 * j + 2 * i + 1,
                                lead=2 * VPF - 1,
                                ins=["ds_read_b64_tr_b16 %s, v%d offset:%d" % (vr(r + 2 * jj, 2), V_WA + tt, kb * 4096 + jj * 2048)
                                     for jj in range(2)]))
        out.sort(key=lambda f: (f["first"], f["tag"][0] != "q"))
        return out

    def addr_setup(j6):
        if j6 < 3:
            e("s_add_u32 s%d, s%d, s%d" % (S_RQ, S_RD, S_WB))
            rd_inc()
            for kk in range(2):
                e("v_add_u32 v%d, s%d, v%d" % (V_WA + 2 + kk, S_RQ, V_KQ + kk))
                e("v_add_u32 v%d, s%d, v%d" % (V_WA + kk, S_RD, V_KQ + kk))
            rd_inc()
        else:
            for tt in range(4):
                e("v_add_u32 v%d, s%d, v%d" % (V_WA + tt, S_RD, V_VB + tt))
            rd_inc()

    def barrier(chunks, flush_tag):
        w = min(wait_for(n) for n in chunks)
        assert w <= 63
        if flush_tag is not None:
            a.wait_ds(flush_tag)
        e("s_waitcnt vmcnt(%d)" % w)
        e("s_barrier")

    def plan(kind):
        nst = 6 if kind == "last" else 7
        bars = {}
        for j in range(nst):
            bars[j] = [64 * (j - 1) + EB[(j - 1) % 6], [n + (9 if j == 6 else 0) for n in NEED[j % 6]], True]
        if kind == "last":
            if MB >= 0:
                bars[4] = [64 * 3 + MB, bars[4][1], False]
            for j in (5, 4):
                if str(j) in NB:
                    bars[j - 1][1] += bars[j][1]
                    bars[j] = None
        ev = {}
        hist = frags(-1)
        for f in hist:
            f["pos"] = None
        lastread = None
        for j in range(nst):
            fr = frags(j)
            if bars[j] is not None and bars[j][2]:
                asp = bars[j][0]
                assert lastread is None or lastread[0] <= asp, (j, lastread, asp)
                ev.setdefault(asp, []).append((0, "as", j % 6))
                ev.setdefault(asp, []).append((1, "bar", bars[j][1], lastread[1] if lastread else ("v", 5, 31)))
            else:
                asp = lastread[0]
                ev.setdefault(asp, []).append((3, "as", j % 6))
                if bars[j] is not None:
                    assert bars[j][0] <= asp
                    ev.setdefault(bars[j][0], []).append((1, "bar", bars[j][1], None))
            prev = asp
            for f in fr:
                free = max([g["last"] for g in hist if g["regs"] & f["regs"]] + [-10 ** 6])
                p = max(f["first"] - f["lead"], free, asp, prev)
                assert p < f["first"], (j, f["tag"], p)
                prev = p
                f["pos"] = p
                ev.setdefault(p, []).append((2 if p > asp or bars[j] is not None and bars[j][2] else 4, "rd", f))
                hist.append(f)
                lastread = (p, f["tag"])
        vend = []
        for j in range(6):
            nb_ = bars.get(j + 1)
            vend.append(min(VEND, nb_[0] - 64 * j - 1) if nb_ is not None else VEND)
        return ev, vend

    def run_events(ev, p):
        for x in sorted(ev.pop(p, []), key=lambda x: x[0]):
            if x[1] == "as":
                addr_setup(x[2])
            elif x[1] == "bar":
                barrier(x[2], x[3])
            else:
                for ins in x[2]["ins"]:
                    a.ds(ins, x[2]["tag"])

    out_bodies = {}
    LACC = [sblk(0, 0) + 4, sblk(0, 1) + 4]

    def head(kind):
        cur["kind"] = kind
        lo_n = NPRO if kind == "first" else 4
        hi_n = 9 if kind == "last" else 13
        pend["ld"] = [(n, k) for n in range(lo_n, hi_n) for k in range(4)]
        ev, vend = plan(kind)
        if kind != "first":
            vm.clear()
            for p in [p for p in ev if p < 0]:
                ev.pop(p)
        else:
            for p in sorted(p for p in ev if p < 0):
                run_events(ev, p)
        if kind != "last":
            e("s_add_u32 s%d, s%d, %d" % (S_NEXT, S_HEAD, HS * HEAD_BYTES))
        for j in range(6):
            stamp(6 * KIDX[kind] + j)
            slots = {}
            if j == 3:
                assert not pend["st"]
            for p_, op in side_ops(j, vend[j]):
                slots.setdefault(p_, []).append(op)
            if j < 3:
                maxq = []
                seen = set()
                for i, (kt, kk) in enumerate(kitems(j)):
                    for u in range(2):
                        m = 2 * i + u
                        a.wait_ds(("k", j, i))
                        a.wait_ds(("q", j, u, kk))
                        acc = vr(stile(kt, u), 4)
                        e("v_mfma_f32_16x16x32_bf16 %s, %s, %s, %s" % (
                            acc, vr(KFR[(32 * j + i) % 12], 4), vr(V_Q + 8 * kk + 4 * u, 4), "0" if (j == 0 and kk == 0) else acc))
                        run_events(ev, 64 * j + m)
                        if j == 2:
                            if kk == 1:
                                b = stile(kt, u)
                                if u not in seen:
                                    maxq.append((m + 4, "v_max_f32 v%d, v%d, v%d" % (V_M + u, b, b + 1)))
                                    seen.add(u)
                                else:
                                    maxq.append((m + 4, "v_max3_f32 v%d, v%d, v%d, v%d" % (V_M + u, V_M + u, b, b + 1)))
                                maxq.append((m + 4, "v_max3_f32 v%d, v%d, v%d, v%d" % (V_M + u, V_M + u, b + 2, b + 3)))
                            for _ in range(2 if len(maxq) > 2 * (64 - m) // 3 + 4 else 1):
                                if maxq and maxq[0][0] <= m:
                                    e(maxq.pop(0)[1])
                        for op in slots.pop(m, []):
                            emit(op)
                if j == 2:
                    for _, op in maxq:
                        e(op)
                    for u in range(2):
                        for op in xlane(V_M + u, "v_max_f32"):
                            e(op)
                        e("v_mul_f32 v%d, s%d, v%d" % (V_M + u, S_C, V_M + u))
                    for kb in range(PRE):
                        for u in range(2):
                            for op in exp_ops(kb, u):
                                e(op)
            else:
                c = j - 3
                buf = V_OB if c == 1 else V_OA
                if c == 0:
                    for kb in range(8 - PRE):
                        fill = exp_ops(kb + PRE, 0) + exp_ops(kb + PRE, 1)
                        n = len(fill)
                        for q in range(8):
                            for op in fill[n * q // 8:n * (q + 1) // 8]:
                                slots.setdefault(8 * kb + q, []).append(("v", op))
                for i, (kb, tt) in enumerate(VITEMS):
                    for u in range(2):
                        m = 2 * i + u
                        a.wait_ds(("v", j, i))
                        acc = vr(buf + (2 * tt + u) * 4, 4)
                        e("v_mfma_f32_16x16x32_bf16 %s, %s, %s, %s" % (acc, vr(VFR[i % 8], 4), vr(sblk(kb, u), 4),
                                                                      "0" if kb == 0 else acc))
                        if c == 0 and tt in (1, 3) and u == 1:
                            uu = tt >> 1
                            la = vr(LACC[uu], 4)
                            e("v_mfma_f32_16x16x32_bf16 %s, %s, %s, %s" % (la, vr(V_ONE, 4), vr(sblk(kb, uu), 4),
                                                                          "0" if kb == 0 else la))
                        run_events(ev, 64 * j + m)
                        for op in slots.pop(m, []):
                            emit(op)
                if c == 0:
                    for u in range(2):
                        e("v_rcp_f32 v%d, v%d" % (V_L + u, LACC[u]))
            assert not slots
        assert not pend["ld"] and not pend["st"]
        assert all(p >= 384 for p in ev), sorted(ev)
        e("s_mov_b32 s%d, s%d" % (S_PREV, S_HEAD))
        if kind != "last":
            e("s_mov_b32 s%d, s%d" % (S_HEAD, S_NEXT))
            e("s_add_u32 s%d, s%d, 1" % (S_IT, S_IT))
        out_bodies[kind] = list(vm)

    assert msum
    head("first")
    entry = list(a.lgkm)
    a.label("L_head")
    head("loop")
    assert a.lgkm == entry, (a.lgkm, entry)
    e("s_cmp_lt_u32 s%d, 3" % S_IT)
    e("s_cbranch_scc1 L_head")
    head("last")
    win_on[0] = False
    stamp(22)
    ops, rd, st = epi_ops(V_OA, 2, S_PREV)
    for op in ops + rd + st:
        emit(op)
    a.skip = ()
    if stamps:
        stamp(23)
        e("s_waitcnt vmcnt(0)")
        stamp(19)
        stamp(21, True)
        e("s_load_dwordx2 s[92:93], s[0:1], 40")
        e("s_waitcnt lgkmcnt(0)")
        for i in range(24):
            e("v_writelane_b32 v%d, s%d, %d" % (V_ST, 44 + 2 * i, i))
        e("s_getreg_b32 s94, hwreg(HW_REG_XCC_ID)")
        e("s_getreg_b32 s95, hwreg(HW_REG_HW_ID)")
        e("v_writelane_b32 v%d, s94, 24" % V_ST)
        e("v_writelane_b32 v%d, s95, 25" % V_ST)
        e("s_mov_b32 s56, s92")
        e("s_and_b32 s57, s93, 0xffff")
        e("s_mov_b32 s58, 0x1000000")
        e("s_mov_b32 s59, 0x20000")
        e("s_lshl_b32 s60, s2, 3")
        e("s_add_u32 s60, s60, s%d" % S_WAVE)
        e("s_lshl_b32 s60, s60, 8")
        e("v_lshrrev_b32 v28, 2, v%d" % V_LIN)
        e("buffer_store_dword v%d, v28, s[56:59], s60 offen" % V_ST)
        e("s_waitcnt vmcnt(0)")
    a.label("L_end")
    e("s_endpgm")
    if bodies is None:
        return gen(ldf.strip(), stf.strip(), opts, bodies=out_bodies)
    assert bodies == out_bodies
    if "al" in opts:
        print("align: promoted %d padded %d" % a.align8())
    grid = int(optval(opts, "grid", str(NWG)))
    return HEADER % (grid, LDS_BYTES, NAME, NAME, NAME) + a.text() + FOOTER % (NAME, 256, 96 if stamps else 80, 256)


if __name__ == "__main__":
    out = sys.argv[1] if len(sys.argv) > 1 else "cdna_kernels/%s.s" % NAME
    ld = sys.argv[2] if len(sys.argv) > 2 else "nt"
    st = sys.argv[3] if len(sys.argv) > 3 else "sc1"
    opts = sys.argv[4].split(",") if len(sys.argv) > 4 else ()
    open(out, "w").write(gen(ld, st, opts))
    print("wrote", out)
```
